```python
import torch

def _softmax(x, axis=-1):
    return torch.softmax(x, dim=axis)
def _gelu(x):
    return torch.nn.functional.gelu(x, approximate="tanh")
def _silu(x):
    return torch.nn.functional.silu(x)
def _sigmoid(x):
    return torch.sigmoid(x)
def _layernorm(x, axis=-1, eps=1e-5):
    m = x.mean(dim=axis, keepdim=True)
    v = x.var(dim=axis, keepdim=True, unbiased=False)
    return (x - m) / torch.sqrt(v + eps)
def _scatter_add(tgt, idx, src, axis=0):
    return tgt.clone().index_add_(axis, idx, src)
def _segment_sum(src, seg, n):
    out = torch.zeros((n,) + src.shape[1:], dtype=src.dtype)
    return out.index_add_(0, seg, src)
def _pad(x, pw):
    flat = tuple(v for pair in reversed(pw) for v in pair)
    return torch.nn.functional.pad(x, flat)

kernel_name = 'concat_heads__compressed_kv_cla__compressed_kv_cla__decode'

def setup_inputs():

    _w = (lambda a: (lambda t: t.to(torch.bfloat16) if t.is_floating_point() else t)(torch.as_tensor(a)))
    def _A_setup():
        B, H, Sq, Sk, D, M = 4, 32, 1, 4096, 128, 512
        Dc = 4 * D
        return {
            "x": _w((lambda *s: torch.randn(*s, dtype=torch.bfloat16) * 3.2)(B, Sq, M)),
            "c_kv": _w((lambda *s: torch.randn(*s, dtype=torch.bfloat16) * 0.05)(B, Sk, Dc)),
            "w_q": _w((lambda *s: torch.randn(*s, dtype=torch.bfloat16) * 3.2)(M, H, D) * (M ** -0.5)),
            "w_uk": _w((lambda *s: torch.randn(*s, dtype=torch.bfloat16) * 3.2)(Dc, H, D) * (Dc ** -0.5)),
            "w_uv": _w((lambda *s: torch.randn(*s, dtype=torch.bfloat16) * 0.05)(Dc, H, D) * (Dc ** -0.5)),
            "w_o": _w((lambda *s: torch.randn(*s, dtype=torch.bfloat16) * 0.05)(H, D, M) * ((H * D) ** -0.5)),
        }
    _A_in = _A_setup()

    def _B_setup():
        B, H, Sq, Sk, D, M = 4, 32, 1, 4096, 128, 512
        Dc = 4 * D
        return {
            "x": _w((lambda *s: torch.randn(*s, dtype=torch.bfloat16) * 3.2)(B, Sq, M)),
            "c_kv": _w((lambda *s: torch.randn(*s, dtype=torch.bfloat16) * 0.05)(B, Sk, Dc)),
            "w_q": _w((lambda *s: torch.randn(*s, dtype=torch.bfloat16) * 3.2)(M, H, D) * (M ** -0.5)),
            "w_uk": _w((lambda *s: torch.randn(*s, dtype=torch.bfloat16) * 3.2)(Dc, H, D) * (Dc ** -0.5)),
            "w_uv": _w((lambda *s: torch.randn(*s, dtype=torch.bfloat16) * 0.05)(Dc, H, D) * (Dc ** -0.5)),
            "w_o": _w((lambda *s: torch.randn(*s, dtype=torch.bfloat16) * 0.05)(H, D, M) * ((H * D) ** -0.5)),
        }
    _B_in = _B_setup()

    return {
        "A_x": _A_in["x"],
        "A_c_kv": _A_in["c_kv"],
        "A_w_q": _A_in["w_q"],
        "A_w_uk": _A_in["w_uk"],
        "A_w_uv": _A_in["w_uv"],
        "A_w_o": _A_in["w_o"],
        "B_x": _B_in["x"],
        "B_c_kv": _B_in["c_kv"],
        "B_w_q": _B_in["w_q"],
        "B_w_uk": _B_in["w_uk"],
        "B_w_uv": _B_in["w_uv"],
        "B_w_o": _B_in["w_o"],
    }

def reference(A_x, A_c_kv, A_w_q, A_w_uk, A_w_uv, A_w_o, B_x, B_c_kv, B_w_q, B_w_uk, B_w_uv, B_w_o):
    def _A_ref(x, c_kv, w_q, w_uk, w_uv, w_o):
        B, Sq, M = x.shape[0], x.shape[1], x.shape[2]
        Sk = c_kv.shape[1]
        H, D = w_q.shape[1], w_q.shape[2]
        q = torch.einsum("bqm,mhd->bhqd", x, w_q)
        k = torch.einsum("bkc,chd->bhkd", c_kv, w_uk)
        v = torch.einsum("bkc,chd->bhkd", c_kv, w_uv)
        scores = torch.einsum("bhqd,bhkd->bhqk", q, k) * (D ** -0.5)
        off = Sk - Sq
        qi = torch.arange(Sq)[:, None]
        kj = torch.arange(Sk)[None, :]
        cmask = kj <= (qi + off)
        scores = torch.where(cmask[None, None], scores, -1e9)
        p = _softmax(scores, axis=-1)
        ctx = torch.einsum("bhqk,bhkd->bhqd", p, v)
        return torch.einsum("bhqd,hdm->bqm", ctx, w_o)

    def _B_ref(x, c_kv, w_q, w_uk, w_uv, w_o):
        B, Sq, M = x.shape[0], x.shape[1], x.shape[2]
        Sk = c_kv.shape[1]
        H, D = w_q.shape[1], w_q.shape[2]
        q = torch.einsum("bqm,mhd->bhqd", x, w_q)
        k = torch.einsum("bkc,chd->bhkd", c_kv, w_uk)
        v = torch.einsum("bkc,chd->bhkd", c_kv, w_uv)
        scores = torch.einsum("bhqd,bhkd->bhqk", q, k) * (D ** -0.5)
        off = Sk - Sq
        qi = torch.arange(Sq)[:, None]
        kj = torch.arange(Sk)[None, :]
        cmask = kj <= (qi + off)
        scores = torch.where(cmask[None, None], scores, -1e9)
        p = _softmax(scores, axis=-1)
        ctx = torch.einsum("bhqk,bhkd->bhqd", p, v)
        return torch.einsum("bhqd,hdm->bqm", ctx, w_o)

    a = _A_ref(A_x, A_c_kv, A_w_q, A_w_uk, A_w_uv, A_w_o)
    b = _B_ref(B_x, B_c_kv, B_w_q, B_w_uk, B_w_uv, B_w_o)
    return torch.concatenate([a, b], axis=-1)
```

```python
import sys, struct

NAME = "concat_heads__compressed_kv_cla__compressed_kv_cla__decode"

HEADER = open("cdna_kernels/%s.s.ref" % NAME).read().split("; Override launch geometry")[0]

QA_OFF = 0x0
ST_OFF = 0x80000
OP_OFF = 0x100000
FP_OFF = 0x1000000
DBG_OFF = 0x2000000
WS_BYTES = 268435456

CKV = 0
QL = 131072
NQREG = 4
MISC = QL + (32 - NQREG) * 1024
SEQA = MISC
SEQB = MISC + 16
SEQG = MISC + 32
ZERO = MISC + 64
MX = MISC + 256
LP = MISC + 768
FIN = MISC + 1280
QS = QL
PL = QL
OST = QL + 8704
CC = 0
CX = 4096
LDS_BYTES = 163840


def f32bits(x):
    return struct.unpack("<I", struct.pack("<f", x))[0]


class Asm:
    def __init__(self):
        self.l = []
        self.nlab = 0

    def __call__(self, s):
        self.l.append("    " + s)

    def label(self, s):
        self.l.append(s + ":")

    def newlabel(self, p="L"):
        self.nlab += 1
        return "%s_%d" % (p, self.nlab)

    def c(self, s):
        self.l.append("    ; " + s)


class Vm:
    def __init__(self, a):
        self.a = a
        self.ops = []

    def issue(self, tag=None):
        self.ops.append(tag)

    def wait(self, tag):
        idx = max(i for i, t in enumerate(self.ops) if t == tag)
        n = len(self.ops) - 1 - idx
        self.a("s_waitcnt vmcnt(%d)" % min(n, 63))

    def waitn(self, n):
        self.a("s_waitcnt vmcnt(%d)" % min(n, 63))

    def done_upto(self, n):
        return len(self.ops) - 1 - n


def vr(b, n=1):
    return "v%d" % b if n == 1 else "v[%d:%d]" % (b, b + n - 1)


def sr(b, n=1):
    return "s%d" % b if n == 1 else "s[%d:%d]" % (b, b + n - 1)


sX, sCKV, sWQ, sWUK, sWUV, sWO, sOUT, sDBG, sWS = 36, 40, 44, 48, 52, 56, 60, 64, 68
sH, sP, sCQ, sWV = 72, 73, 74, 75
sW4 = 76
sT0, sT1, sT2, sT3 = 77, 78, 79, 80
sSELL, sSELH = 81, 82
sSC = 83
sTO = 84
sMSK = 85
sK = 86
sK2 = 90
sSTAMP = 4
sCLK = 94


def gen(WB=8, DEBUG=False, CKV_POL="", W_POL="", BDELAY=False, SLP=1):
    a = Asm()
    stamp_n = {"A": 0, "B": 0}

    def stamp(role):
        if not DEBUG:
            return
        k = stamp_n[role]
        stamp_n[role] += 1
        assert k < 16
        a("s_memrealtime s[%d:%d]" % (sCLK, sCLK + 1))
        a("s_waitcnt lgkmcnt(0)")
        a("s_mov_b32 s%d, s%d" % (sSTAMP + k, sCLK))

    def stamp_flush(role):
        if not DEBUG:
            return
        lab = a.newlabel("L_nost")
        a("s_cmp_lg_u32 s%d, 0" % sW4)
        a("s_cbranch_scc1 %s" % lab)
        a("s_lshl_b32 s%d, s2, 7" % sT0)
        a("s_add_u32 s%d, s%d, %d" % (sT0, sT0, DBG_OFF + (64 if role == "B" else 0)))
        a("s_mov_b64 exec, 1")
        a("v_mov_b32 v250, 0")
        for k in range(stamp_n[role]):
            a("v_mov_b32 v251, s%d" % (sSTAMP + k))
            a("buffer_store_dword v251, v250, s[%d:%d], s%d offen offset:%d" % (sWS, sWS + 3, sT0, 4 * k))
            a("s_nop 1")
        a("s_mov_b64 exec, -1")
        a.label(lab)

    vTID, vL, vC16, vG = 0, 1, 2, 3
    vSEQ = 4
    vMISC = 5
    vTMP = 6
    vSW = 252

    def seq_set(val):
        a("v_mov_b32 v%d, %d" % (vTMP, val))
        a("ds_write_b32 v%d, v%d" % (vSEQ, vTMP))

    def seq_set_at(off, val):
        a("v_mov_b32 v%d, %d" % (vTMP, val))
        a("ds_write_b32 v%d, v%d offset:%d" % (vMISC, vTMP, off - MISC))

    def seq_wait(off, val, nwords=4):
        lp = a.newlabel("L_sw")
        a.label(lp)
        if nwords == 4:
            a("ds_read_b128 v[%d:%d], v%d offset:%d" % (vSW, vSW + 3, vMISC, off - MISC))
            a("s_waitcnt lgkmcnt(0)")
            a("v_min_u32 v%d, v%d, v%d" % (vSW, vSW, vSW + 1))
            a("v_min3_u32 v%d, v%d, v%d, v%d" % (vSW, vSW, vSW + 2, vSW + 3))
        else:
            a("ds_read_b32 v%d, v%d offset:%d" % (vSW, vMISC, off - MISC))
            a("s_waitcnt lgkmcnt(0)")
        a("s_sub_u32 s%d, s%d, 1" % (sTO, sTO))
        a("s_cbranch_scc1 L_end")
        a("v_readfirstlane_b32 s%d, v%d" % (sT3, vSW))
        a("s_cmp_ge_u32 s%d, %d" % (sT3, val))
        a("s_cbranch_scc0 %s" % lp)

    def gpoll(mask, vm):
        a("s_mov_b32 s%d, 0x%08x" % (sMSK, mask))
        lp = a.newlabel("L_gp")
        dn = a.newlabel("L_gpd")
        a.label(lp)
        a("buffer_load_dword v%d, v%d, s[%d:%d], 0 offen sc1" % (vTMP, vPOLL, sDBG, sDBG + 3))
        a("s_waitcnt vmcnt(0)")
        a("v_and_b32 v%d, s%d, v%d" % (vTMP, sMSK, vTMP))
        a("v_cmp_ne_u32 vcc, s%d, v%d" % (sMSK, vTMP))
        a("s_cbranch_vccz %s" % dn)
        a("s_sub_u32 s%d, s%d, 1" % (sTO, sTO))
        a("s_cbranch_scc1 L_end")
        a("s_sleep %d" % SLP)
        a("s_branch %s" % lp)
        a.label(dn)
        vm.ops = []

    def perm_block_to(dst, src):
        for u in range(4):
            for e in range(2):
                t = 2 * u + e
                for q in range(4):
                    a("v_perm_b32 v%d, v%d, v%d, s%d" % (dst + 4 * t + q, src + 4 * (2 * q + 1) + u,
                                                        src + 4 * (2 * q) + u, sSELH if e else sSELL))

    def perm_t(dst, src, t):
        u, e = t >> 1, t & 1
        for q in range(4):
            a("v_perm_b32 v%d, v%d, v%d, s%d" % (dst + q, src + 4 * (2 * q + 1) + u,
                                                src + 4 * (2 * q) + u, sSELH if e else sSELL))

    a("s_cmp_ge_u32 s2, 256")
    a("s_cbranch_scc1 L_end")
    a("s_load_dwordx16 s[4:19], s[0:1], 0")
    a("s_load_dwordx8 s[20:27], s[0:1], 64")
    a("s_load_dwordx4 s[28:31], s[0:1], 96")
    a("s_load_dwordx2 s[32:33], s[0:1], 112")
    a("v_lshrrev_b32 v6, 6, v0")
    a("v_and_b32 v%d, 63, v0" % vL)
    a("v_and_b32 v%d, 15, v0" % vC16)
    a("v_readfirstlane_b32 s%d, v6" % sWV)
    a("v_lshrrev_b32 v%d, 4, v%d" % (vG, vL))
    a("s_and_b32 s%d, s2, 31" % sH)
    a("s_bfe_u32 s%d, s2, 0x10005" % sP)
    a("s_lshr_b32 s%d, s2, 6" % sCQ)
    a("s_and_b32 s%d, s%d, 3" % (sW4, sWV))
    a("s_mov_b32 s%d, 0x05040100" % sSELL)
    a("s_mov_b32 s%d, 0x07060302" % sSELH)
    a("s_mov_b32 s%d, 0x%08x" % (sSC, f32bits(128 ** -0.5 * 1.4426950408889634)))
    a("s_mov_b32 s%d, 0x400000" % sTO)
    a("v_lshlrev_b32 v7, 2, v0")
    a("v_add_u32 v7, %d, v7" % MISC)
    a("v_mov_b32 v8, 0")
    a("ds_write_b32 v7, v8")
    a("v_mov_b32 v%d, %d" % (vMISC, MISC))
    a("v_lshlrev_b32 v6, 2, v6")
    a("v_add_u32 v%d, %d, v6" % (vSEQ, MISC))
    a("s_waitcnt lgkmcnt(0)")
    a("s_cmp_eq_u32 s%d, 0" % sP)
    for k, (srd, nbytes) in enumerate([(sX, 4096), (sCKV, 16777216), (sWQ, 4194304), (sWUK, 4194304),
                                       (sWUV, 4194304), (sWO, 4194304)]):
        a("s_cselect_b64 s[%d:%d], s[%d:%d], s[%d:%d]" % (srd, srd + 1, 4 + 2 * k, 5 + 2 * k, 16 + 2 * k, 17 + 2 * k))
    for k, (srd, nbytes) in enumerate([(sX, 4096), (sCKV, 16777216), (sWQ, 4194304), (sWUK, 4194304),
                                       (sWUV, 4194304), (sWO, 4194304)]):
        a("s_and_b32 s%d, s%d, 0xffff" % (srd + 1, srd + 1))
        a("s_mov_b32 s%d, %d" % (srd + 2, nbytes))
        a("s_mov_b32 s%d, 0x00020000" % (srd + 3))
    for srd, src, nbytes in [(sOUT, 28, 8192), (sDBG, 30, 256), (sWS, 32, WS_BYTES)]:
        a("s_mov_b32 s%d, s%d" % (srd, src))
        a("s_and_b32 s%d, s%d, 0xffff" % (srd + 1, src + 1))
        a("s_mov_b32 s%d, %d" % (srd + 2, nbytes))
        a("s_mov_b32 s%d, 0x00020000" % (srd + 3))
    a("s_barrier")
    a("s_cmp_ge_u32 s%d, 4" % sWV)
    a("s_cbranch_scc1 L_B")

    vm = Vm(a)
    vXO, vWQO, vWKO, vFPO, vPOLL, vL16 = 8, 9, 10, 11, 12, 13
    XF, WQ, WUK, ACC, T = 32, 48, 176, 208, 240
    stamp("A")
    a.c("---- A: address setup")
    a("s_lshl_b32 s%d, s%d, 8" % (sT0, sW4))
    a("v_lshlrev_b32 v%d, 10, v%d" % (vXO, vC16))
    a("v_lshl_add_u32 v%d, v%d, 4, v%d" % (vXO, vG, vXO))
    a("v_add_u32 v%d, s%d, v%d" % (vXO, sT0, vXO))
    a("s_lshl_b32 s%d, s%d, 20" % (sT0, sW4))
    a("v_lshlrev_b32 v%d, 16, v%d" % (vWQO, vG))
    a("v_lshl_add_u32 v%d, v%d, 4, v%d" % (vWQO, vC16, vWQO))
    a("v_add_u32 v%d, s%d, v%d" % (vWQO, sT0, vWQO))
    a("s_lshl_b32 s%d, s%d, 18" % (sT0, sW4))
    a("v_lshlrev_b32 v%d, 13, v%d" % (vWKO, vC16))
    a("v_lshl_add_u32 v%d, v%d, 4, v%d" % (vWKO, vG, vWKO))
    a("v_add_u32 v%d, s%d, v%d" % (vWKO, sT0, vWKO))
    a("v_lshlrev_b32 v%d, 4, v0" % vFPO)
    a("v_lshlrev_b32 v%d, 4, v%d" % (vL16, vL))
    a("s_lshl_b32 s%d, s%d, 8" % (sT1, sH))
    for i in range(4):
        a("s_add_u32 s%d, s%d, %d" % (sT0, sCQ, i))
        a("s_and_b32 s%d, s%d, 3" % (sT0, sT0))
        a("s_lshl_b32 s%d, s%d, 6" % (sK2 + i, sT0))
        a("s_lshl_b32 s%d, s%d, 18" % (sK + i, sT0))
        a("s_add_u32 s%d, s%d, s%d" % (sK + i, sK + i, sT1))
    for i in range(4):
        a("buffer_load_dwordx4 %s, v%d, s[%d:%d], s%d offen" % (vr(XF + 4 * i, 4), vXO, sX, sX + 3, sK2 + i))
        vm.issue("x%d" % i)
    for i in range(4):
        for j in range(8):
            a("s_add_u32 s%d, s%d, %d" % (sT0, sK + i, j * 8192))
            a("buffer_load_dwordx4 %s, v%d, s[%d:%d], s%d offen %s" % (vr(WQ + 32 * i + 4 * j, 4), vWQO, sWQ, sWQ + 3, sT0, W_POL))
            vm.issue("wq%d" % i)
    a("s_lshl_b32 s%d, s%d, 20" % (sT0, sCQ))
    a("s_add_u32 s%d, s%d, s%d" % (sT0, sT0, sT1))
    a("s_add_u32 s%d, s%d, %d" % (sT2, sT0, 16 * 8192))
    for rt in range(2):
        for kk in range(4):
            a("buffer_load_dwordx4 %s, v%d, s[%d:%d], s%d offen offset:%d %s" % (
                vr(WUK + 16 * rt + 4 * kk, 4), vWKO, sWUK, sWUK + 3, sT2 if rt else sT0, 64 * kk, CKV_POL))
            vm.issue("wuk")
    a.c("---- FP sentinel prefill")
    for k in range(4):
        a("v_mov_b32 v%d, -1" % (248 + k))
    a("s_lshl_b32 s%d, s%d, 7" % (sT0, sP))
    a("s_lshl_b32 s%d, s%d, 5" % (sT1, sCQ))
    a("s_add_u32 s%d, s%d, s%d" % (sT0, sT0, sT1))
    a("s_add_u32 s%d, s%d, s%d" % (sT0, sT0, sH))
    a("v_mov_b32 v14, s%d" % sT0)
    a("s_lshl_b32 s%d, s%d, 13" % (sT0, sT0))
    a("s_add_u32 s%d, s%d, %d" % (sK2, sT0, FP_OFF))
    a("s_add_u32 s%d, s%d, 4096" % (sK2 + 1, sK2))
    a("buffer_store_dwordx4 v[248:251], v%d, s[%d:%d], s%d offen sc1" % (vFPO, sWS, sWS + 3, sK2))
    vm.issue("pf")
    a("buffer_store_dwordx4 v[248:251], v%d, s[%d:%d], s%d offen sc1" % (vFPO, sWS, sWS + 3, sK2 + 1))
    vm.issue("pf")
    vFLG = 14
    a("v_and_b32 v%d, 31, v%d" % (vPOLL, vL))
    a("v_lshlrev_b32 v%d, 2, v%d" % (vPOLL, vPOLL))
    a("s_lshl_b32 s%d, s%d, 7" % (sT0, sP))
    a("v_add_u32 v%d, s%d, v%d" % (vPOLL, sT0, vPOLL))

    a.c("---- phase 1: q partial = x . w_q")
    for i in range(4):
        vm.wait("wq%d" % i)
        if i == 3:
            stamp("A")
        perm_t(T, WQ + 32 * i, 0)
        for t in range(8):
            if t + 1 < 8:
                perm_t(T + 4 * ((t + 1) & 1), WQ + 32 * i, t + 1)
            else:
                a("s_nop 1")
            a("v_mfma_f32_16x16x32_bf16 %s, %s, %s, %s" % (vr(ACC + 4 * t, 4), vr(XF + 4 * i, 4), vr(T + 4 * (t & 1), 4),
                                                         "0" if i == 0 else vr(ACC + 4 * t, 4)))
    vQSW, vQSR = 15, 16
    a("s_mul_i32 s%d, s%d, %d" % (sT0, sW4, 4 * 272))
    a("s_add_u32 s%d, s%d, %d" % (sT0, sT0, QS))
    a("v_lshlrev_b32 v%d, 4, v%d" % (vQSW, vC16))
    a("v_add_u32 v%d, s%d, v%d" % (vQSW, sT0, vQSW))
    a("v_mul_u32_u24 v%d, 272, v%d" % (vQSR, vC16))
    a("v_lshl_add_u32 v%d, v%d, 4, v%d" % (vQSR, vG, vQSR))
    a("v_add_u32 v%d, %d, v%d" % (vQSR, QS, vQSR))
    a("s_nop 3")
    a("s_mov_b64 exec, 0xffff")
    E = 48
    for b in range(4):
        for u in range(4):
            a("v_cvt_pk_bf16_f32 v%d, v%d, v%d" % (E + 4 * b + u, ACC + 8 * u + b, ACC + 8 * u + 4 + b))
        a("ds_write_b128 v%d, %s offset:%d" % (vQSW, vr(E + 4 * b, 4), 272 * b))
    a("s_mov_b64 exec, -1")
    a("s_waitcnt lgkmcnt(0)")
    seq_set(1)
    seq_wait(SEQA, 1)
    a.c("---- phase 2: q_abs = q . w_uk^T")
    QF = 32
    D2 = 208
    for kk in range(4):
        a("ds_read_b128 %s, v%d offset:%d" % (vr(QF + 4 * kk, 4), vQSR, 64 * kk))
    vm.wait("wuk")
    a("s_waitcnt lgkmcnt(0)")
    for kk in range(4):
        for rt in range(2):
            a("v_mfma_f32_16x16x32_bf16 %s, %s, %s, %s" % (vr(D2 + 4 * rt, 4), vr(WUK + 16 * rt + 4 * kk, 4), vr(QF + 4 * kk, 4),
                                                         "0" if kk == 0 else vr(D2 + 4 * rt, 4)))
    vQAO = 17
    a("v_lshlrev_b32 v%d, 15, v%d" % (vQAO, vC16))
    a("v_lshrrev_b32 v%d, 1, v%d" % (vTMP, vG))
    a("v_lshl_add_u32 v%d, v%d, 9, v%d" % (vQAO, vTMP, vQAO))
    a("v_and_b32 v%d, 1, v%d" % (vTMP, vG))
    a("v_lshl_add_u32 v%d, v%d, 3, v%d" % (vQAO, vTMP, vQAO))
    a("s_lshl_b32 s%d, s%d, 17" % (sT0, sP))
    a("s_lshl_b32 s%d, s%d, 13" % (sT1, sCQ))
    a("s_add_u32 s%d, s%d, s%d" % (sT0, sT0, sT1))
    a("s_lshl_b32 s%d, s%d, 11" % (sT1, sW4))
    a("s_add_u32 s%d, s%d, s%d" % (sT0, sT0, sT1))
    a("s_lshl_b32 s%d, s%d, 4" % (sT1, sH))
    a("s_add_u32 s%d, s%d, s%d" % (sT0, sT0, sT1))
    if QA_OFF:
        a("s_add_u32 s%d, s%d, %d" % (sT0, sT0, QA_OFF))
    a("s_nop 3")
    for k in range(8):
        a("v_add_f32_dpp v%d, v%d, v%d row_ror:8 row_mask:0xf bank_mask:0xf" % (D2 + k, D2 + k, D2 + k))
    for k in range(8):
        a("v_add_f32_dpp v%d, v%d, v%d row_ror:4 row_mask:0xf bank_mask:0xf" % (D2 + k, D2 + k, D2 + k))
    for k in range(8):
        a("v_mul_f32 v%d, s%d, v%d" % (D2 + k, sSC, D2 + k))
    for k in range(4):
        a("v_cvt_pk_bf16_f32 v%d, v%d, v%d" % (E + k, D2 + 2 * k, D2 + 2 * k + 1))
    a("s_mov_b32 exec_lo, 0x000f000f")
    a("s_mov_b32 exec_hi, 0x000f000f")
    for rt in range(2):
        a("buffer_store_dwordx2 %s, v%d, s[%d:%d], s%d offen offset:%d sc1" % (vr(E + 2 * rt, 2), vQAO, sWS, sWS + 3, sT0, 1024 * rt))
        vm.issue("qa")
    a("s_mov_b64 exec, -1")
    stamp("A")
    a("s_waitcnt vmcnt(0)")
    vm.ops = []
    seq_set(2)
    l_n0 = a.newlabel("L_notw0")
    l_j0 = a.newlabel("L_join")
    a("s_cmp_lg_u32 s%d, 0" % sW4)
    a("s_cbranch_scc1 %s" % l_n0)
    seq_wait(SEQA, 2)
    a("s_mov_b64 exec, 1")
    a("v_mov_b32 v%d, 1" % vTMP)
    a("buffer_store_byte v%d, v%d, s[%d:%d], 0 offen sc1" % (vTMP, vFLG, sDBG, sDBG + 3))
    a("s_mov_b64 exec, -1")
    stamp("A")
    gpoll(0x01010101, vm)
    seq_set_at(SEQG, 1)
    a("s_branch %s" % l_j0)
    a.label(l_n0)
    seq_wait(SEQG, 1, 1)
    a.label(l_j0)
    stamp("A")
    a.c("---- load Q (b = cq)")
    QR, QT = 32, 48
    a("s_lshl_b32 s%d, s%d, 2" % (sT0, sP))
    a("s_add_u32 s%d, s%d, s%d" % (sT0, sT0, sCQ))
    a("s_lshl_b32 s%d, s%d, 15" % (sT0, sT0))
    if QA_OFF:
        a("s_add_u32 s%d, s%d, %d" % (sT0, sT0, QA_OFF))
    a("s_mul_i32 s%d, s%d, %d" % (sT1, sW4, 7 * 1024))
    a("s_add_u32 s%d, s%d, s%d" % (sT2, sT0, sT1))
    for i in range(7):
        a("s_add_u32 s%d, s%d, %d" % (sT3, sT2, (NQREG + i) * 1024))
        a("buffer_load_dwordx4 %s, v%d, s[%d:%d], s%d offen sc1" % (vr(QT + 4 * i, 4), vL16, sWS, sWS + 3, sT3))
        vm.issue("qt%d" % i)
    for st in range(NQREG):
        a("buffer_load_dwordx4 %s, v%d, s[%d:%d], s%d offen offset:%d sc1" % (vr(QR + 4 * st, 4), vL16, sWS, sWS + 3, sT0, 1024 * st))
        vm.issue("qr")
    vQW, vQRD = 15, 16
    a("s_add_u32 s%d, s%d, %d" % (sT1, sT1, QL))
    a("v_add_u32 v%d, s%d, v%d" % (vQW, sT1, vL16))
    a("v_add_u32 v%d, %d, v%d" % (vQRD, QL, vL16))
    vCA = 80
    vKEY, vG2, vF = 17, 18, 19
    a("v_and_b32 v%d, 31, v%d" % (vKEY, vL))
    a("v_lshrrev_b32 v%d, 5, v%d" % (vG2, vL))
    a("v_and_b32 v%d, 3, v%d" % (vF, vKEY))
    a("v_bfe_u32 v%d, v%d, 2, 2" % (vTMP, vKEY))
    a("v_lshl_add_u32 v%d, v%d, 2, v%d" % (vF, vF, vTMP))
    a("v_xor_b32 v%d, v%d, v%d" % (vF, vF, vG2))
    a("s_lshl_b32 s%d, s%d, 15" % (sT1, sW4))
    a("v_lshlrev_b32 v%d, 10, v%d" % (vTMP, vKEY))
    a("v_add_u32 v%d, s%d, v%d" % (vTMP, sT1, vTMP))
    for s8 in range(8):
        a("v_xor_b32 v%d, %d, v%d" % (vTMP + 1, 2 * s8, vF))
        a("v_lshl_add_u32 v%d, v%d, 4, v%d" % (vCA + s8, vTMP + 1, vTMP))
    for i in range(7):
        vm.wait("qt%d" % i)
        a("ds_write_b128 v%d, %s offset:%d" % (vQW, vr(QT + 4 * i, 4), 1024 * i))
    a("s_waitcnt vmcnt(0) lgkmcnt(0)")
    vm.ops = []
    seq_set(3)
    seq_wait(SEQA, 3)
    stamp("A")
    seq_wait(SEQB, 1)
    stamp("A")
    a.c("---- QK^T")
    S = 208
    CF, QFR = 48, 64
    DEPTH = 4
    nout = []

    def qk_issue(st):
        n = 1
        a("ds_read_b128 %s, v%d offset:%d" % (vr(CF + 4 * (st % DEPTH), 4), vCA + (st & 7), 256 * (st >> 3)))
        if st >= NQREG:
            a("ds_read_b128 %s, v%d offset:%d" % (vr(QFR + 4 * (st % DEPTH), 4), vQRD, 1024 * (st - NQREG)))
            n = 2
        nout.append(n)

    for st in range(DEPTH):
        qk_issue(st)
    for st in range(32):
        pend = sum(nout[st + 1:])
        a("s_waitcnt lgkmcnt(%d)" % pend)
        qb = vr(QR + 4 * st, 4) if st < NQREG else vr(QFR + 4 * (st % DEPTH), 4)
        a("v_mfma_f32_32x32x16_bf16 %s, %s, %s, %s" % (vr(S, 16), vr(CF + 4 * (st % DEPTH), 4), qb, "0" if st == 0 else vr(S, 16)))
        if st + DEPTH < 32:
            qk_issue(st + DEPTH)
    a.c("---- softmax")
    vM, vM2, vLS = 20, 21, 22
    vMXA, vPW, vPR = 23, 24, 25
    a("v_lshlrev_b32 v%d, 4, v%d" % (vMXA, vKEY))
    a("v_add_u32 v%d, %d, v%d" % (vMXA, MX, vMXA))
    a("s_lshl_b32 s%d, s%d, 2" % (sT0, sW4))
    a("v_add_u32 v%d, s%d, v%d" % (vTMP, sT0, vMXA))
    a("v_mul_u32_u24 v%d, 272, v%d" % (vPR, vKEY))
    a("v_add_u32 v%d, %d, v%d" % (vPR, PL, vPR))
    a("s_lshl_b32 s%d, s%d, 6" % (sT0, sW4))
    a("v_lshl_add_u32 v%d, v%d, 3, v%d" % (vPW, vG2, vPR))
    a("v_add_u32 v%d, s%d, v%d" % (vPW, sT0, vPW))
    a("v_lshl_add_u32 v%d, v%d, 4, v%d" % (vPR, vG2, vPR))
    a("s_nop 4")
    a("v_max3_f32 v%d, v%d, v%d, v%d" % (vM, S, S + 1, S + 2))
    for k in range(3, 15, 2):
        a("v_max3_f32 v%d, v%d, v%d, v%d" % (vM, vM, S + k, S + k + 1))
    a("v_max_f32 v%d, v%d, v%d" % (vM, vM, S + 15))
    a("v_mov_b32 v%d, v%d" % (vM2, vM))
    a("s_nop 1")
    a("v_permlane32_swap_b32 v%d, v%d" % (vM, vM2))
    a("v_max_f32 v%d, v%d, v%d" % (vM, vM, vM2))
    a("ds_write_b32 v%d, v%d" % (vTMP, vM))
    a("v_mov_b32 v26, v%d" % vTMP)
    a("s_waitcnt lgkmcnt(0)")
    seq_set(4)
    seq_wait(SEQA, 4)
    a("ds_read_b128 v[48:51], v%d" % vMXA)
    a("s_waitcnt lgkmcnt(0)")
    a("v_max3_f32 v%d, v48, v49, v50" % vM)
    a("v_max_f32 v%d, v%d, v51" % (vM, vM))
    for k in range(16):
        a("v_sub_f32 v%d, v%d, v%d" % (S + k, S + k, vM))
    for k in range(16):
        a("v_exp_f32 v%d, v%d" % (S + k, S + k))
    a("s_nop 0")
    for ig in range(4):
        a("v_cvt_pk_bf16_f32 v%d, v%d, v%d" % (48 + 2 * ig, S + 4 * ig, S + 4 * ig + 1))
        a("v_cvt_pk_bf16_f32 v%d, v%d, v%d" % (49 + 2 * ig, S + 4 * ig + 2, S + 4 * ig + 3))
        a("ds_write_b64 v%d, %s offset:%d" % (vPW, vr(48 + 2 * ig, 2), 16 * ig))
    a("v_add_f32 v%d, v%d, v%d" % (vLS, S, S + 1))
    for k in range(2, 16):
        a("v_add_f32 v%d, v%d, v%d" % (vLS, vLS, S + k))
    a("v_mov_b32 v%d, v%d" % (vM2, vLS))
    a("s_nop 1")
    a("v_permlane32_swap_b32 v%d, v%d" % (vLS, vM2))
    a("v_add_f32 v%d, v%d, v%d" % (vLS, vLS, vM2))
    a("ds_write_b32 v26, v%d offset:%d" % (vLS, LP - MX))
    vTA = 80
    vLAM, vGAM = 27, 28
    a("v_bfe_u32 v%d, v%d, 4, 1" % (vGAM, vL))
    a("v_lshrrev_b32 v%d, 2, v%d" % (vLAM, vC16))
    a("v_lshl_add_u32 v%d, v%d, 3, v%d" % (vTMP, vG2, vLAM))
    a("v_lshlrev_b32 v%d, 10, v%d" % (vTMP, vTMP))
    a("v_and_b32 v%d, 1, v%d" % (vTMP + 1, vC16))
    a("v_lshl_add_u32 v%d, v%d, 3, v%d" % (vTMP, vTMP + 1, vTMP))
    a("s_lshl_b32 s%d, s%d, 8" % (sT0, sW4))
    a("v_add_u32 v%d, s%d, v%d" % (vTMP, sT0, vTMP))
    a("v_bfe_u32 v%d, v%d, 1, 1" % (vTMP + 1, vC16))
    a("v_lshl_add_u32 v%d, v%d, 1, v%d" % (vTMP + 1, vGAM, vTMP + 1))
    a("v_lshlrev_b32 v29, 1, v%d" % vG2)
    a("v_xor_b32 v%d, v%d, v29" % (vTMP + 1, vTMP + 1))
    for ct in range(4):
        for e in range(2):
            a("v_xor_b32 v29, %d, v%d" % (ct, vLAM))
            a("v_lshl_add_u32 v29, v29, 2, v%d" % (vTMP + 1))
            if e:
                a("v_xor_b32 v29, 1, v29")
            a("v_lshl_add_u32 v%d, v29, 4, v%d" % (vTA + 2 * ct + e, vTMP))
            if e:
                a("v_add_u32 v%d, 4096, v%d" % (vTA + 2 * ct + e, vTA + 2 * ct + e))
    a("s_waitcnt lgkmcnt(0)")
    seq_set(5)
    seq_wait(SEQA, 5)
    a.c("---- PV")
    O = 96
    PF = 48
    AF = 160

    def pv_issue(ks):
        buf = ks & 1
        a("ds_read_b128 %s, v%d offset:%d" % (vr(PF + 4 * buf, 4), vPR, 32 * ks))
        for ct in range(4):
            for e in range(2):
                a("ds_read_b64_tr_b16 %s, v%d offset:%d" % (vr(AF + 16 * buf + 4 * ct + 2 * e, 2), vTA + 2 * ct + e, 16384 * (ks & 3)))

    a("ds_read_b128 v[56:59], v%d offset:%d" % (vMXA, LP - MX))
    pv_issue(0)
    for ks in range(8):
        buf = ks & 1
        if ks + 1 < 8:
            if ks + 1 == 4:
                for k in range(8):
                    a("v_add_u32 v%d, 0x10000, v%d" % (vTA + k, vTA + k))
            pv_issue(ks + 1)
        nxt = 9 if ks + 1 < 8 else 0
        for ct in range(4):
            a("s_waitcnt lgkmcnt(%d)" % (nxt + 2 * (3 - ct)))
            a("v_mfma_f32_32x32x16_bf16 %s, %s, %s, %s" % (vr(O + 16 * ct, 16), vr(AF + 16 * buf + 4 * ct, 4), vr(PF + 4 * buf, 4),
                                                         "0" if ks == 0 else vr(O + 16 * ct, 16)))
    a.c("---- O epilogue")
    a("v_add_f32 v%d, v56, v57" % vLS)
    a("v_add_f32 v58, v58, v59")
    a("v_add_f32 v%d, v%d, v58" % (vLS, vLS))
    vIL = 26
    a("v_rcp_f32 v%d, v%d" % (vIL, vLS))
    vOW, vOR, vOG = 27, 28, 29
    a("s_mul_i32 s%d, s%d, 4608" % (sT0, sW4))
    a("s_add_u32 s%d, s%d, %d" % (sT0, sT0, OST))
    a("v_mul_u32_u24 v%d, 144, v%d" % (vOW, vKEY))
    a("v_lshl_add_u32 v%d, v%d, 3, v%d" % (vOW, vG2, vOW))
    a("v_add_u32 v%d, s%d, v%d" % (vOW, sT0, vOW))
    a("v_lshrrev_b32 v%d, 3, v%d" % (vTMP, vL))
    a("v_and_b32 v%d, 7, v%d" % (vTMP + 1, vL))
    a("v_mul_u32_u24 v%d, 144, v%d" % (vOR, vTMP))
    a("v_lshl_add_u32 v%d, v%d, 4, v%d" % (vOR, vTMP + 1, vOR))
    a("v_add_u32 v%d, s%d, v%d" % (vOR, sT0, vOR))
    a("v_lshlrev_b32 v%d, 17, v%d" % (vOG, vTMP))
    a("v_lshl_add_u32 v%d, v%d, 4, v%d" % (vOG, vTMP + 1, vOG))
    a("s_lshl_b32 s%d, s%d, 22" % (sT0, sP))
    a("s_lshl_b32 s%d, s%d, 15" % (sT1, sW4))
    a("s_add_u32 s%d, s%d, s%d" % (sT0, sT0, sT1))
    a("s_lshl_b32 s%d, s%d, 13" % (sT1, sCQ))
    a("s_add_u32 s%d, s%d, s%d" % (sT0, sT0, sT1))
    a("s_lshl_b32 s%d, s%d, 8" % (sT1, sH))
    a("s_add_u32 s%d, s%d, s%d" % (sT0, sT0, sT1))
    a("s_add_u32 s%d, s%d, %d" % (sK, sT0, OP_OFF))
    for u in range(1, 4):
        a("s_add_u32 s%d, s%d, %d" % (sK + u, sK, u * 8 * 131072))
    l_ns = a.newlabel("L_nostat")
    a("s_cmp_lg_u32 s%d, 0" % sW4)
    a("s_cbranch_scc1 %s" % l_ns)
    a("s_lshl_b32 s%d, s%d, 15" % (sT0, sP))
    a("s_lshl_b32 s%d, s%d, 8" % (sT1, sCQ))
    a("s_add_u32 s%d, s%d, s%d" % (sT0, sT0, sT1))
    a("s_lshl_b32 s%d, s%d, 3" % (sT1, sH))
    a("s_add_u32 s%d, s%d, s%d" % (sT0, sT0, sT1))
    a("s_add_u32 s%d, s%d, %d" % (sT0, sT0, ST_OFF))
    a("v_lshlrev_b32 v%d, 10, v%d" % (vTMP, vKEY))
    a("v_mov_b32 v60, v%d" % vM)
    a("v_mov_b32 v61, v%d" % vLS)
    a("s_mov_b64 exec, 0xffffffff")
    a("buffer_store_dwordx2 v[60:61], v%d, s[%d:%d], s%d offen sc1" % (vTMP, sWS, sWS + 3, sT0))
    a("s_mov_b64 exec, -1")
    a.label(l_ns)
    a("s_nop 7")
    OB = 160
    RB = 192
    for r in range(2):
        for c2 in range(2):
            ct = 2 * r + c2
            for k in range(16):
                a("v_mul_f32 v%d, v%d, v%d" % (O + 16 * ct + k, O + 16 * ct + k, vIL))
            for ig in range(4):
                d = OB + 16 * r + 8 * c2 + 2 * ig
                a("v_cvt_pk_bf16_f32 v%d, v%d, v%d" % (d, O + 16 * ct + 4 * ig, O + 16 * ct + 4 * ig + 1))
                a("v_cvt_pk_bf16_f32 v%d, v%d, v%d" % (d + 1, O + 16 * ct + 4 * ig + 2, O + 16 * ct + 4 * ig + 3))
        if r == 1:
            a("s_waitcnt lgkmcnt(0)")
        for c2 in range(2):
            for ig in range(4):
                d = OB + 16 * r + 8 * c2 + 2 * ig
                a("ds_write_b64 v%d, %s offset:%d" % (vOW, vr(d, 2), 64 * c2 + 16 * ig))
        if r == 1:
            for u in range(4):
                a("buffer_store_dwordx4 %s, v%d, s[%d:%d], s%d offen sc1" % (vr(RB + 4 * u, 4), vOG, sWS, sWS + 3, sK + u))
        a("s_waitcnt lgkmcnt(0)")
        for u in range(4):
            a("ds_read_b128 %s, v%d offset:%d" % (vr(RB + 16 * r + 4 * u, 4), vOR, 8 * 144 * u))
    for u in range(4):
        a("s_waitcnt lgkmcnt(%d)" % (3 - u))
        a("buffer_store_dwordx4 %s, v%d, s[%d:%d], s%d offen offset:128 sc1" % (vr(RB + 16 + 4 * u, 4), vOG, sWS, sWS + 3, sK + u))
    stamp("A")
    a("s_waitcnt vmcnt(0)")
    seq_set(6)
    l_n0 = a.newlabel("L_notw0")
    l_j0 = a.newlabel("L_join")
    a("s_cmp_lg_u32 s%d, 0" % sW4)
    a("s_cbranch_scc1 %s" % l_n0)
    seq_wait(SEQA, 6)
    a("s_mov_b64 exec, 1")
    a("v_mov_b32 v%d, 3" % vTMP)
    a("buffer_store_byte v%d, v%d, s[%d:%d], 0 offen sc1" % (vTMP, vFLG, sDBG, sDBG + 3))
    a("s_mov_b64 exec, -1")
    stamp("A")
    gpoll(0x02020202, vm)
    seq_set_at(SEQG, 2)
    a("s_branch %s" % l_j0)
    a.label(l_n0)
    seq_wait(SEQG, 2, 1)
    a.label(l_j0)
    stamp("A")
    a.c("---- combine (b = a)")
    OL, SM = 48, 80
    a("s_lshl_b32 s%d, s%d, 5" % (sT0, sP))
    a("s_add_u32 s%d, s%d, s%d" % (sT0, sT0, sH))
    a("s_lshl_b32 s%d, s%d, 2" % (sT1, sT0))
    a("s_add_u32 s%d, s%d, s%d" % (sT2, sT1, sW4))
    a("s_lshl_b32 s%d, s%d, 8" % (sT2, sT2))
    a("s_add_u32 s%d, s%d, %d" % (sT2, sT2, ST_OFF))
    a("s_add_u32 s%d, s%d, s%d" % (sT1, sT1, sCQ))
    a("s_lshl_b32 s%d, s%d, 2" % (sT1, sT1))
    a("s_add_u32 s%d, s%d, s%d" % (sT1, sT1, sW4))
    a("s_lshl_b32 s%d, s%d, 13" % (sT1, sT1))
    a("s_add_u32 s%d, s%d, %d" % (sT1, sT1, OP_OFF))
    a("v_lshlrev_b32 v15, 6, v%d" % vG)
    a("v_lshlrev_b32 v16, 11, v%d" % vG)
    a("v_lshl_add_u32 v16, v%d, 4, v16" % vC16)
    for v4 in range(4):
        a("buffer_load_dwordx4 %s, v15, s[%d:%d], s%d offen offset:%d sc1" % (vr(SM + 4 * v4, 4), sWS, sWS + 3, sT2, 16 * v4))
        vm.issue("sm")
    for u in range(8):
        a("buffer_load_dwordx4 %s, v16, s[%d:%d], s%d offen offset:%d sc1" % (vr(OL + 4 * u, 4), sWS, sWS + 3, sT1, 256 * u))
        vm.issue("ol%d" % u)
    vm.wait("sm")
    a("v_max3_f32 v%d, v%d, v%d, v%d" % (vM, SM, SM + 2, SM + 4))
    a("v_max3_f32 v%d, v%d, v%d, v%d" % (vM, vM, SM + 6, SM + 8))
    a("v_max3_f32 v%d, v%d, v%d, v%d" % (vM, vM, SM + 10, SM + 12))
    a("v_max_f32 v%d, v%d, v%d" % (vM, vM, SM + 14))
    a("v_mov_b32 v%d, v%d" % (vM2, vM))
    a("s_nop 1")
    a("v_permlane32_swap_b32 v%d, v%d" % (vM, vM2))
    a("v_max_f32 v%d, v%d, v%d" % (vM, vM, vM2))
    a("v_mov_b32 v%d, v%d" % (vM2, vM))
    a("s_nop 1")
    a("v_permlane16_swap_b32 v%d, v%d" % (vM, vM2))
    a("v_max_f32 v%d, v%d, v%d" % (vM, vM, vM2))
    for u in range(8):
        a("v_sub_f32 v%d, v%d, v%d" % (SM + 2 * u, SM + 2 * u, vM))
    for u in range(8):
        a("v_exp_f32 v%d, v%d" % (SM + 2 * u, SM + 2 * u))
    a("s_nop 0")
    for u in range(8):
        a("v_mul_f32 v%d, v%d, v%d" % (SM + 2 * u, SM + 2 * u, SM + 2 * u + 1))
    a("v_add_f32 v%d, v%d, v%d" % (vLS, SM, SM + 2))
    for u in range(2, 8):
        a("v_add_f32 v%d, v%d, v%d" % (vLS, vLS, SM + 2 * u))
    a("v_mov_b32 v%d, v%d" % (vM2, vLS))
    a("s_nop 1")
    a("v_permlane32_swap_b32 v%d, v%d" % (vLS, vM2))
    a("v_add_f32 v%d, v%d, v%d" % (vLS, vLS, vM2))
    a("v_mov_b32 v%d, v%d" % (vM2, vLS))
    a("s_nop 1")
    a("v_permlane16_swap_b32 v%d, v%d" % (vLS, vM2))
    a("v_add_f32 v%d, v%d, v%d" % (vLS, vLS, vM2))
    a("v_rcp_f32 v%d, v%d" % (vIL, vLS))
    a("s_nop 0")
    for u in range(8):
        a("v_mul_f32 v%d, v%d, v%d" % (SM + 2 * u, SM + 2 * u, vIL))
    CA = 96
    for u in range(8):
        vm.wait("ol%d" % u)
        for k in range(4):
            a("v_lshlrev_b32 v%d, 16, v%d" % (104 + 2 * k, OL + 4 * u + k))
            a("v_and_b32 v%d, 0xffff0000, v%d" % (105 + 2 * k, OL + 4 * u + k))
        for k in range(8):
            if u == 0:
                a("v_mul_f32 v%d, v%d, v%d" % (CA + k, 104 + k, SM))
            else:
                a("v_fmac_f32 v%d, v%d, v%d" % (CA + k, 104 + k, SM + 2 * u))
    a("s_nop 1")
    for k in range(4):
        a("v_permlane32_swap_b32 v%d, v%d" % (CA + k, CA + k + 4))
    for k in range(4):
        a("v_add_f32 v%d, v%d, v%d" % (CA + k, CA + k, CA + k + 4))
    a("s_nop 1")
    for k in range(2):
        a("v_permlane16_swap_b32 v%d, v%d" % (CA + k, CA + k + 2))
    for k in range(2):
        a("v_add_f32 v%d, v%d, v%d" % (CA + k, CA + k, CA + k + 2))
    a("v_cvt_pk_bf16_f32 v%d, v%d, v%d" % (CA, CA, CA + 1))
    a("s_mul_i32 s%d, s%d, 272" % (sT0, sW4))
    if CC:
        a("s_add_u32 s%d, s%d, %d" % (sT0, sT0, CC))
    a("v_lshlrev_b32 v15, 4, v%d" % vC16)
    a("v_lshl_add_u32 v15, v%d, 2, v15" % vG)
    a("v_add_u32 v15, s%d, v15" % sT0)
    a("ds_write_b32 v15, v%d" % CA)
    a("s_waitcnt lgkmcnt(0)")
    seq_set(7)
    stamp("A")
    a.c("---- final reduce")
    FL = 48
    lp = a.newlabel("L_fp")
    dn = a.newlabel("L_fpd")
    a.label(lp)
    a("buffer_load_dwordx4 %s, v%d, s[%d:%d], s%d offen sc1" % (vr(FL, 4), vFPO, sWS, sWS + 3, sK2))
    a("buffer_load_dwordx4 %s, v%d, s[%d:%d], s%d offen sc1" % (vr(FL + 4, 4), vFPO, sWS, sWS + 3, sK2 + 1))
    a("s_waitcnt vmcnt(0)")
    a("v_max_u32 v15, v%d, v%d" % (FL, FL + 1))
    a("v_max3_u32 v15, v15, v%d, v%d" % (FL + 2, FL + 3))
    a("v_max3_u32 v15, v15, v%d, v%d" % (FL + 4, FL + 5))
    a("v_max3_u32 v15, v15, v%d, v%d" % (FL + 6, FL + 7))
    a("v_cmp_eq_u32 vcc, -1, v15")
    a("s_cbranch_vccz %s" % dn)
    a("s_sub_u32 s%d, s%d, 1" % (sTO, sTO))
    a("s_cbranch_scc1 L_end")
    a("s_sleep %d" % SLP)
    a("s_branch %s" % lp)
    a.label(dn)
    stamp("A")
    for k in range(4):
        a("v_add_f32 v%d, v%d, v%d" % (FL + k, FL + k, FL + 4 + k))
    a("s_nop 1")
    for k in range(4):
        a("v_add_f32_dpp v%d, v%d, v%d row_ror:8 row_mask:0xf bank_mask:0xf" % (FL + k, FL + k, FL + k))
    for k in range(4):
        a("v_add_f32_dpp v%d, v%d, v%d row_ror:4 row_mask:0xf bank_mask:0xf" % (FL + k, FL + k, FL + k))
    a("s_nop 1")
    a("v_permlane32_swap_b32 v%d, v%d" % (FL, FL + 2))
    a("v_permlane32_swap_b32 v%d, v%d" % (FL + 1, FL + 3))
    a("v_add_f32 v%d, v%d, v%d" % (FL, FL, FL + 2))
    a("v_add_f32 v%d, v%d, v%d" % (FL + 1, FL + 1, FL + 3))
    a("s_nop 1")
    a("v_permlane16_swap_b32 v%d, v%d" % (FL, FL + 1))
    a("v_add_f32 v%d, v%d, v%d" % (FL, FL, FL + 1))
    a("v_and_b32 v15, 3, v%d" % vL)
    a("v_lshl_add_u32 v15, v15, 2, v%d" % vG)
    a("v_lshlrev_b32 v15, 4, v15")
    a("s_lshl_b32 s%d, s%d, 2" % (sT0, sW4))
    a("s_add_u32 s%d, s%d, %d" % (sT0, sT0, FIN))
    a("v_add_u32 v15, s%d, v15" % sT0)
    a("ds_write_b32 v15, v%d" % FL)
    a("s_waitcnt lgkmcnt(0)")
    seq_set(8)
    l_e = a.newlabel("L_aend")
    a("s_cmp_lg_u32 s%d, 0" % sW4)
    a("s_cbranch_scc1 %s" % l_e)
    seq_wait(SEQA, 8)
    a("v_lshlrev_b32 v15, 4, v%d" % vC16)
    a("v_add_u32 v15, %d, v15" % FIN)
    a("ds_read_b128 v[48:51], v15")
    a("s_waitcnt lgkmcnt(0)")
    a("v_add_f32 v48, v48, v49")
    a("v_add_f32 v50, v50, v51")
    a("v_add_f32 v48, v48, v50")
    a("v_cvt_pk_bf16_f32 v48, v48, v48")
    a("s_lshl_b32 s%d, s%d, 11" % (sT0, sCQ))
    a("s_lshl_b32 s%d, s%d, 10" % (sT1, sP))
    a("s_add_u32 s%d, s%d, s%d" % (sT0, sT0, sT1))
    a("s_lshl_b32 s%d, s%d, 5" % (sT1, sH))
    a("s_add_u32 s%d, s%d, s%d" % (sT0, sT0, sT1))
    a("v_lshlrev_b32 v15, 1, v%d" % vC16)
    a("s_mov_b64 exec, 0xffff")
    a("buffer_store_short v48, v15, s[%d:%d], s%d offen" % (sOUT, sOUT + 3, sT0))
    a("s_mov_b64 exec, -1")
    stamp("A")
    stamp_flush("A")
    a.label(l_e)
    a("s_endpgm")

    a.label("L_B")
    vm = Vm(a)
    stamp("B")
    vL16b, vWVO, vWOO = 13, 9, 10
    a("v_lshlrev_b32 v%d, 4, v%d" % (vL16b, vL))
    a("s_lshl_b32 s%d, s%d, 22" % (sK, sCQ))
    a("s_lshl_b32 s%d, s%d, 17" % (sT0, sH))
    a("s_add_u32 s%d, s%d, s%d" % (sK, sK, sT0))
    a("s_lshl_b32 s%d, s%d, 15" % (sK + 1, sW4))
    a("s_add_u32 s%d, s%d, s%d" % (sK, sK, sK + 1))
    a("v_lshlrev_b32 v%d, 16, v%d" % (vWVO, vG))
    a("v_lshl_add_u32 v%d, v%d, 4, v%d" % (vWVO, vC16, vWVO))
    a("s_lshl_b32 s%d, s%d, 18" % (sT0, sW4))
    a("v_add_u32 v%d, s%d, v%d" % (vWVO, sT0, vWVO))
    a("s_lshl_b32 s%d, s%d, 20" % (sK + 2, sCQ))
    a("s_lshl_b32 s%d, s%d, 8" % (sT0, sH))
    a("s_add_u32 s%d, s%d, s%d" % (sK + 2, sK + 2, sT0))
    a("v_lshlrev_b32 v%d, 13, v%d" % (vWOO, vG))
    a("v_lshl_add_u32 v%d, v%d, 4, v%d" % (vWOO, vC16, vWOO))
    a("s_lshl_b32 s%d, s%d, 8" % (sT0, sW4))
    a("v_add_u32 v%d, s%d, v%d" % (vWOO, sT0, vWOO))
    a("s_lshl_b32 s%d, s%d, 17" % (sT1, sH))
    for i in range(4):
        a("s_add_u32 s%d, s%d, %d" % (sT0, sCQ, i))
        a("s_and_b32 s%d, s%d, 3" % (sT0, sT0))
        a("s_lshl_b32 s%d, s%d, 15" % (sK2 + i, sT0))
        a("s_add_u32 s%d, s%d, s%d" % (sK2 + i, sK2 + i, sT1))
    if BDELAY:
        seq_wait(SEQA, 1)
    BUF = [32 + 32 * k for k in range(6)]
    state = {"ckv_sig": False, "nblk": 0}

    def progress(n):
        done = vm.done_upto(n)
        if not state["ckv_sig"]:
            idx = [i for i, t in enumerate(vm.ops) if t == "ckv"]
            if len(idx) == 32 and done >= idx[-1]:
                seq_set(1)
                stamp("B")
                state["ckv_sig"] = True
        while state["nblk"] < 5:
            k = state["nblk"]
            idx = [i for i, t in enumerate(vm.ops) if t == "blk%d" % k]
            if len(idx) == 8 and done >= idx[-1]:
                perm_block_to(BUF[k], BUF[k + 1])
                state["nblk"] += 1
            else:
                break

    def window():
        if len(vm.ops) >= WB:
            vm.waitn(WB - 1)
            progress(WB - 1)

    for i in range(32):
        f = ((i & 3) << 2) | ((i >> 2) & 3)
        a("s_add_u32 m0, s%d, %d" % (sK + 1, i * 1024))
        a("s_add_u32 s%d, s%d, %d" % (sT0, sK, i * 1024))
        a("v_xor_b32 v%d, %d, v%d" % (vTMP, 16 * f, vL16b))
        a("buffer_load_dwordx4 v%d, s[%d:%d], s%d offen %s lds" % (vTMP, sCKV, sCKV + 3, sT0, CKV_POL))
        vm.issue("ckv")
        window()
    for j in range(8):
        a("s_add_u32 s%d, s%d, %d" % (sT0, sK + 2, j * 8192))
        a("buffer_load_dwordx4 %s, v%d, s[%d:%d], s%d offen %s" % (vr(BUF[1] + 4 * j, 4), vWVO, sWUV, sWUV + 3, sT0, CKV_POL))
        vm.issue("blk0")
        window()
    for i in range(4):
        for j in range(8):
            a("s_add_u32 s%d, s%d, %d" % (sT0, sK2 + i, j * 1024))
            a("buffer_load_dwordx4 %s, v%d, s[%d:%d], s%d offen %s" % (vr(BUF[i + 2] + 4 * j, 4), vWOO, sWO, sWO + 3, sT0, W_POL))
            vm.issue("blk%d" % (i + 1))
            window()
    for n in range((WB - 1) // 8 * 8, -1, -8):
        vm.waitn(n)
        progress(n)
    assert state["nblk"] == 5 and state["ckv_sig"]
    stamp("B")
    a.c("---- phase 4")
    vCR, vXW, vXR = 11, 12, 14
    a("v_mul_u32_u24 v%d, 272, v%d" % (vCR, vC16))
    a("v_lshl_add_u32 v%d, v%d, 4, v%d" % (vCR, vG, vCR))
    a("v_mov_b32 v%d, v%d" % (vXR, vCR))
    a("s_lshl_b32 s%d, s%d, 6" % (sT0, sW4))
    if CC:
        a("s_add_u32 s%d, s%d, %d" % (sT0, sT0, CC))
    a("v_add_u32 v%d, s%d, v%d" % (vCR, sT0, vCR))
    a("v_mov_b32 v%d, %d" % (vTMP, ZERO))
    a("v_cmp_gt_u32 vcc, 4, v%d" % vC16)
    a("s_nop 1")
    a("v_cndmask_b32 v%d, v%d, v%d, vcc" % (vCR, vTMP, vCR))
    a("v_add_u32 v%d, %d, v%d" % (vXR, CX, vXR))
    a("s_mul_i32 s%d, s%d, %d" % (sT0, sW4, 4 * 272))
    a("s_add_u32 s%d, s%d, %d" % (sT0, sT0, CX))
    a("v_lshlrev_b32 v%d, 4, v%d" % (vXW, vC16))
    a("v_add_u32 v%d, s%d, v%d" % (vXW, sT0, vXW))
    vXA = 16
    for i in range(4):
        a("s_add_u32 s%d, s%d, %d" % (sT0, sCQ, i))
        a("s_and_b32 s%d, s%d, 3" % (sT0, sT0))
        a("s_lshl_b32 s%d, s%d, 6" % (sT0, sT0))
        a("v_add_u32 v%d, s%d, v%d" % (vXA + i, sT0, vXR))
    vFS = 20
    a("v_lshrrev_b32 v%d, 1, v%d" % (vTMP, vC16))
    a("v_lshl_add_u32 v%d, v%d, 5, v%d" % (vTMP, vG, vTMP))
    a("v_lshlrev_b32 v%d, 13, v%d" % (vFS, vTMP))
    a("v_and_b32 v%d, 1, v%d" % (vTMP, vC16))
    a("v_lshl_add_u32 v%d, v%d, 5, v%d" % (vFS, vTMP, vFS))
    a("s_lshl_b32 s%d, s%d, 20" % (sT0, sP))
    a("s_lshl_b32 s%d, s%d, 16" % (sT1, sW4))
    a("s_add_u32 s%d, s%d, s%d" % (sT0, sT0, sT1))
    a("s_lshl_b32 s%d, s%d, 11" % (sT1, sCQ))
    a("s_add_u32 s%d, s%d, s%d" % (sT0, sT0, sT1))
    a("s_lshl_b32 s%d, s%d, 6" % (sT1, sH))
    a("s_add_u32 s%d, s%d, s%d" % (sT0, sT0, sT1))
    a("s_add_u32 s%d, s%d, %d" % (sK + 3, sT0, FP_OFF))
    seq_wait(SEQA, 7)
    stamp("B")
    AFR = 24
    D4 = 192
    a("ds_read_b128 %s, v%d" % (vr(AFR, 4), vCR))
    a("s_waitcnt lgkmcnt(0)")
    for t in range(8):
        a("v_mfma_f32_16x16x32_bf16 %s, %s, %s, 0" % (vr(D4 + 4 * t, 4), vr(AFR, 4), vr(BUF[0] + 4 * t, 4)))
    a("s_nop 7")
    a("s_mov_b64 exec, 0xffff")
    E4 = 224
    for b in range(4):
        for u in range(4):
            a("v_cvt_pk_bf16_f32 v%d, v%d, v%d" % (E4 + 4 * b + u, D4 + 8 * u + b, D4 + 8 * u + 4 + b))
        a("ds_write_b128 v%d, %s offset:%d" % (vXW, vr(E4 + 4 * b, 4), 272 * b))
    a("s_mov_b64 exec, -1")
    a("s_waitcnt lgkmcnt(0)")
    seq_set(2)
    seq_wait(SEQB, 2)
    a.c("---- phase 5")
    XA = 224
    for i in range(4):
        a("ds_read_b128 %s, v%d" % (vr(XA + 4 * i, 4), vXA + i))
    for i in range(4):
        a("s_waitcnt lgkmcnt(%d)" % (3 - i))
        for t in range(8):
            a("v_mfma_f32_16x16x32_bf16 %s, %s, %s, %s" % (vr(D4 + 4 * t, 4), vr(XA + 4 * i, 4), vr(BUF[i + 1] + 4 * t, 4),
                                                         "0" if i == 0 else vr(D4 + 4 * t, 4)))
    a("s_nop 7")
    for t in range(8):
        a("v_permlane32_swap_b32 v%d, v%d" % (D4 + 4 * t, D4 + 4 * t + 2))
        a("v_permlane32_swap_b32 v%d, v%d" % (D4 + 4 * t + 1, D4 + 4 * t + 3))
    for t in range(8):
        a("v_add_f32 v%d, v%d, v%d" % (D4 + 4 * t, D4 + 4 * t, D4 + 4 * t + 2))
        a("v_add_f32 v%d, v%d, v%d" % (D4 + 4 * t + 1, D4 + 4 * t + 1, D4 + 4 * t + 3))
    for t in range(8):
        a("v_permlane16_swap_b32 v%d, v%d" % (D4 + 4 * t, D4 + 4 * t + 1))
    for t in range(8):
        a("v_add_f32 v%d, v%d, v%d" % (XA + t, D4 + 4 * t, D4 + 4 * t + 1))
    a("buffer_store_dwordx4 %s, v%d, s[%d:%d], s%d offen sc1" % (vr(XA, 4), vFS, sWS, sWS + 3, sK + 3))
    a("buffer_store_dwordx4 %s, v%d, s[%d:%d], s%d offen offset:16 sc1" % (vr(XA + 4, 4), vFS, sWS, sWS + 3, sK + 3))
    stamp("B")
    stamp_flush("B")
    a.label("L_end")
    a("s_endpgm")

    txt = HEADER
    txt += "; @launch grid=(256,1,1) block=(512,1,1) lds=%d\n" % LDS_BYTES
    txt += '.amdgcn_target "amdgcn-amd-amdhsa--gfx950"\n.text\n.globl %s_kernel\n.p2align 8\n.type %s_kernel,@function\n%s_kernel:\n' % (NAME, NAME, NAME)
    txt += "\n".join(a.l) + "\n"
    txt += """.section .rodata,"a"
.p2align 6
.amdhsa_kernel %s_kernel
  .amdhsa_next_free_vgpr 256
  .amdhsa_next_free_sgpr 102
  .amdhsa_accum_offset 256
  .amdhsa_group_segment_fixed_size 0
  .amdhsa_kernarg_size 120
  .amdhsa_user_sgpr_count 2
  .amdhsa_user_sgpr_kernarg_segment_ptr 1
  .amdhsa_system_sgpr_workgroup_id_x 1
.end_amdhsa_kernel
""" % NAME
    return txt


if __name__ == "__main__":
    import argparse
    ap = argparse.ArgumentParser()
    ap.add_argument("-o", default="cdna_kernels/%s.s" % NAME)
    ap.add_argument("--wb", type=int, default=8)
    ap.add_argument("--debug", action="store_true")
    ap.add_argument("--ckvpol", default="")
    ap.add_argument("--wpol", default="")
    ap.add_argument("--bdelay", action="store_true")
    ap.add_argument("--slp", type=int, default=1)
    args = ap.parse_args()
    open(args.o, "w").write(gen(WB=args.wb, DEBUG=args.debug, CKV_POL=args.ckvpol, W_POL=args.wpol, BDELAY=args.bdelay, SLP=args.slp))
```

```python
import sys, struct

NAME = "concat_heads__compressed_kv_cla__compressed_kv_cla__decode"

HEADER = open("cdna_kernels/%s.s.ref" % NAME).read().split("; Override launch geometry")[0]

QA_OFF = 0x0
FQ_OFF = 0x70000
ST_OFF = 0x80000
OP_OFF = 0x100000
FP_OFF = 0x1000000
DBG_OFF = 0x2000000
WS_BYTES = 268435456

CKV = 0
QL = 131072
NQREG = 2
MISC = QL + (32 - NQREG) * 1024
SEQA = MISC
SEQB = MISC + 16
SEQG = MISC + 32
SEQP = MISC + 36
ZERO = MISC + 64
MX = MISC + 256
LP = MISC + 768
FIN = MISC + 1280
QS = QL
PL = QL
OST = QL + 8704
CC = 0
CX = 4096
LDS_BYTES = 163840


def f32bits(x):
    return struct.unpack("<I", struct.pack("<f", x))[0]


class Asm:
    def __init__(self):
        self.l = []
        self.nlab = 0

    def __call__(self, s):
        self.l.append("    " + s)

    def label(self, s):
        self.l.append(s + ":")

    def newlabel(self, p="L"):
        self.nlab += 1
        return "%s_%d" % (p, self.nlab)

    def c(self, s):
        self.l.append("    ; " + s)


class Vm:
    def __init__(self, a):
        self.a = a
        self.ops = []

    def issue(self, tag=None):
        self.ops.append(tag)

    def wait(self, tag):
        idx = max(i for i, t in enumerate(self.ops) if t == tag)
        n = len(self.ops) - 1 - idx
        self.a("s_waitcnt vmcnt(%d)" % min(n, 63))

    def waitn(self, n):
        self.a("s_waitcnt vmcnt(%d)" % min(n, 63))

    def done_upto(self, n):
        return len(self.ops) - 1 - n


def vr(b, n=1):
    return "v%d" % b if n == 1 else "v[%d:%d]" % (b, b + n - 1)


def sr(b, n=1):
    return "s%d" % b if n == 1 else "s[%d:%d]" % (b, b + n - 1)


sX, sCKV, sWQ, sWUK, sWUV, sWO, sOUT, sDBG, sWS = 36, 40, 44, 48, 52, 56, 60, 64, 68
sH, sP, sCQ, sWV = 72, 73, 74, 75
sW4 = 76
sT0, sT1, sT2, sT3 = 77, 78, 79, 80
sSELL, sSELH = 81, 82
sSC = 83
sTO = 84
sMSK = 85
sK = 86
sK2 = 90
sSTAMP = 4
sCLK = 94
sAP, sAB, sAS = 96, 97, 98
sDONE = 99
sOP = 32


def gen(WB=8, DEBUG=False, CKV_POL="nt", W_POL="nt", BDELAY=False, SLP=4, ROT=0, CUT=0, WB2=8, QTRIG=20, QPOL="", MAP=1, WO_POL="nt", ILV=1, SLP2=4, SLP3=4):
    a = Asm()
    stamp_n = {"A": 0, "B": 0}

    def stamp(role):
        if not DEBUG:
            return
        k = stamp_n[role]
        stamp_n[role] += 1
        assert k < 28
        a("s_memrealtime s[%d:%d]" % (sCLK, sCLK + 1))
        a("s_waitcnt lgkmcnt(0)")
        a("s_mov_b32 s%d, s%d" % (sSTAMP + k, sCLK))

    def stamp_flush(role):
        if not DEBUG:
            return
        lab = a.newlabel("L_nost")
        a("s_cmp_lg_u32 s%d, 0" % sW4)
        a("s_cbranch_scc1 %s" % lab)
        a("s_lshl_b32 s%d, s2, 8" % sT0)
        a("s_add_u32 s%d, s%d, %d" % (sT0, sT0, DBG_OFF + (128 if role == "B" else 0)))
        a("s_mov_b64 exec, 1")
        a("v_mov_b32 v250, 0")
        for k in range(stamp_n[role]):
            a("v_mov_b32 v251, s%d" % (sSTAMP + k))
            a("buffer_store_dword v251, v250, s[%d:%d], s%d offen offset:%d" % (sWS, sWS + 3, sT0, 4 * k))
            a("s_nop 1")
        a("s_mov_b64 exec, -1")
        a.label(lab)

    vTID, vL, vC16, vG = 0, 1, 2, 3
    vSEQ = 4
    vMISC = 5
    vTMP = 6
    vSW = 252

    def seq_set(val):
        a("v_mov_b32 v%d, %d" % (vTMP, val))
        a("ds_write_b32 v%d, v%d" % (vSEQ, vTMP))

    def seq_set_at(off, val):
        a("v_mov_b32 v%d, %d" % (vTMP, val))
        a("ds_write_b32 v%d, v%d offset:%d" % (vMISC, vTMP, off - MISC))

    def seq_wait(off, val, nwords=4, vaddr=None):
        lp = a.newlabel("L_sw")
        a.label(lp)
        if vaddr is not None:
            a("ds_read_b32 v%d, v%d" % (vSW, vaddr))
            a("s_waitcnt lgkmcnt(0)")
        elif nwords == 4:
            a("ds_read_b128 v[%d:%d], v%d offset:%d" % (vSW, vSW + 3, vMISC, off - MISC))
            a("s_waitcnt lgkmcnt(0)")
            a("v_min_u32 v%d, v%d, v%d" % (vSW, vSW, vSW + 1))
            a("v_min3_u32 v%d, v%d, v%d, v%d" % (vSW, vSW, vSW + 2, vSW + 3))
        else:
            a("ds_read_b32 v%d, v%d offset:%d" % (vSW, vMISC, off - MISC))
            a("s_waitcnt lgkmcnt(0)")
        a("s_sub_u32 s%d, s%d, 1" % (sTO, sTO))
        a("s_cbranch_scc1 L_end")
        a("v_readfirstlane_b32 s%d, v%d" % (sT3, vSW))
        a("s_cmp_ge_u32 s%d, %d" % (sT3, val))
        a("s_cbranch_scc0 %s" % lp)

    def gpoll(mask, vm):
        a("s_mov_b32 s%d, 0x%08x" % (sMSK, mask))
        lp = a.newlabel("L_gp")
        dn = a.newlabel("L_gpd")
        a.label(lp)
        a("buffer_load_dword v%d, v%d, s[%d:%d], 0 offen sc1" % (vTMP, vPOLL, sDBG, sDBG + 3))
        a("s_waitcnt vmcnt(0)")
        a("v_and_b32 v%d, s%d, v%d" % (vTMP, sMSK, vTMP))
        a("v_cmp_ne_u32 vcc, s%d, v%d" % (sMSK, vTMP))
        a("s_cbranch_vccz %s" % dn)
        a("s_sub_u32 s%d, s%d, 1" % (sTO, sTO))
        a("s_cbranch_scc1 L_end")
        a("s_sleep %d" % SLP)
        a("s_branch %s" % lp)
        a.label(dn)
        vm.ops = []

    def perm_block_to(dst, src):
        for u in range(4):
            for e in range(2):
                t = 2 * u + e
                for q in range(4):
                    a("v_perm_b32 v%d, v%d, v%d, s%d" % (dst + 4 * t + q, src + 4 * (2 * q + 1) + u,
                                                        src + 4 * (2 * q) + u, sSELH if e else sSELL))

    def perm_t(dst, src, t):
        u, e = t >> 1, t & 1
        for q in range(4):
            a("v_perm_b32 v%d, v%d, v%d, s%d" % (dst + q, src + 4 * (2 * q + 1) + u,
                                                src + 4 * (2 * q) + u, sSELH if e else sSELL))

    a("s_cmp_ge_u32 s2, 256")
    a("s_cbranch_scc1 L_end")
    a("s_load_dwordx16 s[4:19], s[0:1], 0")
    a("s_load_dwordx8 s[20:27], s[0:1], 64")
    a("s_load_dwordx4 s[28:31], s[0:1], 96")
    a("s_load_dwordx2 s[32:33], s[0:1], 112")
    a("v_lshrrev_b32 v6, 6, v0")
    a("v_and_b32 v%d, 63, v0" % vL)
    a("v_and_b32 v%d, 15, v0" % vC16)
    a("v_readfirstlane_b32 s%d, v6" % sWV)
    a("v_lshrrev_b32 v%d, 4, v%d" % (vG, vL))
    if MAP == 0:
        a("s_and_b32 s%d, s2, 31" % sH)
        a("s_bfe_u32 s%d, s2, 0x10005" % sP)
        a("s_lshr_b32 s%d, s2, 6" % sCQ)
    else:
        a("s_and_b32 s%d, s2, 1" % sP)
        a("s_bfe_u32 s%d, s2, 0x20001" % sH)
        a("s_lshl_b32 s%d, s%d, 3" % (sH, sH))
        a("s_bfe_u32 s%d, s2, 0x30003" % sCQ)
        a("s_add_u32 s%d, s%d, s%d" % (sH, sH, sCQ))
        a("s_lshr_b32 s%d, s2, 6" % sCQ)
    a("s_bfe_u32 s%d, s2, 0x10002" % sAP)
    a("s_and_b32 s%d, s2, 3" % sAB)
    a("s_lshr_b32 s%d, s2, 3" % sAS)
    a("s_and_b32 s%d, s%d, 3" % (sW4, sWV))
    a("s_mov_b32 s%d, 0x05040100" % sSELL)
    a("s_mov_b32 s%d, 0x07060302" % sSELH)
    a("s_mov_b32 s%d, 0x%08x" % (sSC, f32bits(128 ** -0.5 * 1.4426950408889634)))
    a("s_mov_b32 s%d, 0x400000" % sTO)
    a("v_lshlrev_b32 v7, 2, v0")
    a("v_add_u32 v7, %d, v7" % MISC)
    a("v_mov_b32 v8, 0")
    a("ds_write_b32 v7, v8")
    a("v_mov_b32 v%d, %d" % (vMISC, MISC))
    a("v_lshlrev_b32 v6, 2, v6")
    a("v_add_u32 v%d, %d, v6" % (vSEQ, MISC))
    a("s_waitcnt lgkmcnt(0)")
    a("s_cmp_eq_u32 s%d, 0" % sP)
    for k, (srd, nbytes) in enumerate([(sX, 4096), (sCKV, 16777216), (sWQ, 4194304), (sWUK, 4194304),
                                       (sWUV, 4194304), (sWO, 4194304)]):
        a("s_cselect_b64 s[%d:%d], s[%d:%d], s[%d:%d]" % (srd, srd + 1, 4 + 2 * k, 5 + 2 * k, 16 + 2 * k, 17 + 2 * k))
    a("s_cmp_eq_u32 s%d, 0" % sAP)
    a("s_cselect_b64 s[%d:%d], s[6:7], s[18:19]" % (sCKV, sCKV + 1))
    for k, (srd, nbytes) in enumerate([(sX, 4096), (sCKV, 16777216), (sWQ, 4194304), (sWUK, 4194304),
                                       (sWUV, 4194304), (sWO, 4194304)]):
        a("s_and_b32 s%d, s%d, 0xffff" % (srd + 1, srd + 1))
        a("s_mov_b32 s%d, %d" % (srd + 2, nbytes))
        a("s_mov_b32 s%d, 0x00020000" % (srd + 3))
    for srd, src, nbytes in [(sOUT, 28, 8192), (sDBG, 30, 256), (sWS, 32, WS_BYTES)]:
        a("s_mov_b32 s%d, s%d" % (srd, src))
        a("s_and_b32 s%d, s%d, 0xffff" % (srd + 1, src + 1))
        a("s_mov_b32 s%d, %d" % (srd + 2, nbytes))
        a("s_mov_b32 s%d, 0x00020000" % (srd + 3))
    a("s_barrier")
    a("s_cmp_ge_u32 s%d, 4" % sWV)
    a("s_cbranch_scc1 L_B")

    vm = Vm(a)
    vXO, vWQO, vWKO, vFPO, vPOLL, vL16 = 8, 9, 10, 11, 12, 13
    XF, WQ, WUK, ACC, T = 32, 48, 176, 208, 240
    stamp("A")
    a.c("---- nonce publish (WG 0, wave 0)")
    lnn = a.newlabel("L_nonon")
    a("v_mov_b32 v%d, 0" % vPOLL)
    a("s_or_b32 s%d, s2, s%d" % (sT0, sWV))
    a("s_cmp_lg_u32 s%d, 0" % sT0)
    a("s_cbranch_scc1 %s" % lnn)
    a("s_memrealtime s[%d:%d]" % (sCLK, sCLK + 1))
    a("s_waitcnt lgkmcnt(0)")
    a("s_or_b32 s%d, s%d, 1" % (sT0, sCLK))
    a("v_mov_b32 v%d, s%d" % (vTMP, sT0))
    a("s_mov_b64 exec, 1")
    a("buffer_store_dword v%d, v%d, s[%d:%d], 0 offen sc1" % (vTMP, vPOLL, sDBG, sDBG + 3))
    a("s_mov_b64 exec, -1")
    a.label(lnn)
    a.c("---- A: address setup")
    a("s_lshl_b32 s%d, s%d, 8" % (sT0, sW4))
    a("v_lshlrev_b32 v%d, 10, v%d" % (vXO, vC16))
    a("v_lshl_add_u32 v%d, v%d, 4, v%d" % (vXO, vG, vXO))
    a("v_add_u32 v%d, s%d, v%d" % (vXO, sT0, vXO))
    a("s_lshl_b32 s%d, s%d, 20" % (sT0, sW4))
    a("v_lshlrev_b32 v%d, 16, v%d" % (vWQO, vG))
    a("v_lshl_add_u32 v%d, v%d, 4, v%d" % (vWQO, vC16, vWQO))
    a("v_add_u32 v%d, s%d, v%d" % (vWQO, sT0, vWQO))
    a("s_lshl_b32 s%d, s%d, 18" % (sT0, sW4))
    a("v_lshlrev_b32 v%d, 13, v%d" % (vWKO, vC16))
    a("v_lshl_add_u32 v%d, v%d, 4, v%d" % (vWKO, vG, vWKO))
    a("v_add_u32 v%d, s%d, v%d" % (vWKO, sT0, vWKO))
    a("v_lshlrev_b32 v%d, 4, v0" % vFPO)
    a("v_lshlrev_b32 v%d, 4, v%d" % (vL16, vL))
    a("s_lshl_b32 s%d, s%d, 8" % (sT1, sH))
    for i in range(4):
        a(("s_add_u32 s%d, s%d, %d" % (sT0, sCQ, i)) if (ROT & 1) else ("s_mov_b32 s%d, %d" % (sT0, i)))
        a("s_and_b32 s%d, s%d, 3" % (sT0, sT0))
        a("s_lshl_b32 s%d, s%d, 6" % (sK2 + i, sT0))
        a("s_lshl_b32 s%d, s%d, 18" % (sK + i, sT0))
        a("s_add_u32 s%d, s%d, s%d" % (sK + i, sK + i, sT1))
    for i in range(4):
        a("buffer_load_dwordx4 %s, v%d, s[%d:%d], s%d offen" % (vr(XF + 4 * i, 4), vXO, sX, sX + 3, sK2 + i))
        vm.issue("x%d" % i)
    for i in range(4):
        for j in range(8):
            a("s_add_u32 s%d, s%d, %d" % (sT0, sK + i, j * 8192))
            a("buffer_load_dwordx4 %s, v%d, s[%d:%d], s%d offen %s" % (vr(WQ + 32 * i + 4 * j, 4), vWQO, sWQ, sWQ + 3, sT0, W_POL))
            vm.issue("wq%d" % i)
    a("s_lshl_b32 s%d, s%d, 20" % (sT0, sCQ))
    a("s_add_u32 s%d, s%d, s%d" % (sT0, sT0, sT1))
    a("s_add_u32 s%d, s%d, %d" % (sT2, sT0, 16 * 8192))
    for rt in range(2):
        for kk in range(4):
            a("buffer_load_dwordx4 %s, v%d, s[%d:%d], s%d offen offset:%d %s" % (
                vr(WUK + 16 * rt + 4 * kk, 4), vWKO, sWUK, sWUK + 3, sT2 if rt else sT0, 64 * kk, CKV_POL))
            vm.issue("wuk")
    a("s_lshl_b32 s%d, s%d, 7" % (sT0, sP))
    a("s_lshl_b32 s%d, s%d, 5" % (sT1, sCQ))
    a("s_add_u32 s%d, s%d, s%d" % (sT0, sT0, sT1))
    a("s_add_u32 s%d, s%d, s%d" % (sT0, sT0, sH))
    a("s_lshl_b32 s%d, s%d, 13" % (sT0, sT0))
    a("s_add_u32 s%d, s%d, %d" % (sK2, sT0, FP_OFF))
    a("s_add_u32 s%d, s%d, 4096" % (sK2 + 1, sK2))
    vSBO = 14
    a("v_add_u32 v%d, 16, v%d" % (vSBO, vSEQ))
    vNON = 30
    a("buffer_load_dword v%d, v%d, s[%d:%d], 0 offen sc1" % (vNON, vPOLL, sDBG, sDBG + 3))
    vm.issue("non")

    a.c("---- phase 1: q partial = x . w_q")
    for i in range(4):
        vm.wait("wq%d" % i)
        if i == 3:
            stamp("A")
        perm_t(T, WQ + 32 * i, 0)
        for t in range(8):
            if t + 1 < 8:
                perm_t(T + 4 * ((t + 1) & 1), WQ + 32 * i, t + 1)
            else:
                a("s_nop 1")
            a("v_mfma_f32_16x16x32_bf16 %s, %s, %s, %s" % (vr(ACC + 4 * t, 4), vr(XF + 4 * i, 4), vr(T + 4 * (t & 1), 4),
                                                         "0" if i == 0 else vr(ACC + 4 * t, 4)))
    if CUT == 1:
        a("s_waitcnt vmcnt(0)")
        stamp("A")
        stamp_flush("A")
        a("s_endpgm")
    vQSW, vQSR = 15, 16
    a("s_mul_i32 s%d, s%d, %d" % (sT0, sW4, 4 * 272))
    a("s_add_u32 s%d, s%d, %d" % (sT0, sT0, QS))
    a("v_lshlrev_b32 v%d, 4, v%d" % (vQSW, vC16))
    a("v_add_u32 v%d, s%d, v%d" % (vQSW, sT0, vQSW))
    a("v_mul_u32_u24 v%d, 272, v%d" % (vQSR, vC16))
    a("v_lshl_add_u32 v%d, v%d, 4, v%d" % (vQSR, vG, vQSR))
    a("v_add_u32 v%d, %d, v%d" % (vQSR, QS, vQSR))
    a("s_nop 3")
    a("s_mov_b64 exec, 0xffff")
    E = 48
    for b in range(4):
        for u in range(4):
            a("v_cvt_pk_bf16_f32 v%d, v%d, v%d" % (E + 4 * b + u, ACC + 8 * u + b, ACC + 8 * u + 4 + b))
        a("ds_write_b128 v%d, %s offset:%d" % (vQSW, vr(E + 4 * b, 4), 272 * b))
    a("s_mov_b64 exec, -1")
    a("s_waitcnt lgkmcnt(0)")
    seq_set(1)
    seq_wait(SEQA, 1)
    a.c("---- phase 2: q_abs = q . w_uk^T")
    QF = 32
    D2 = 208
    for kk in range(4):
        a("ds_read_b128 %s, v%d offset:%d" % (vr(QF + 4 * kk, 4), vQSR, 64 * kk))
    vm.wait("wuk")
    a("s_waitcnt lgkmcnt(0)")
    for kk in range(4):
        for rt in range(2):
            a("v_mfma_f32_16x16x32_bf16 %s, %s, %s, %s" % (vr(D2 + 4 * rt, 4), vr(WUK + 16 * rt + 4 * kk, 4), vr(QF + 4 * kk, 4),
                                                         "0" if kk == 0 else vr(D2 + 4 * rt, 4)))
    vQAO = 17
    a("v_lshlrev_b32 v%d, 15, v%d" % (vQAO, vC16))
    a("v_lshrrev_b32 v%d, 1, v%d" % (vTMP, vG))
    a("v_lshl_add_u32 v%d, v%d, 9, v%d" % (vQAO, vTMP, vQAO))
    a("v_and_b32 v%d, 1, v%d" % (vTMP, vG))
    a("v_lshl_add_u32 v%d, v%d, 3, v%d" % (vQAO, vTMP, vQAO))
    a("s_lshl_b32 s%d, s%d, 17" % (sT0, sP))
    a("s_lshl_b32 s%d, s%d, 13" % (sT1, sCQ))
    a("s_add_u32 s%d, s%d, s%d" % (sT0, sT0, sT1))
    a("s_lshl_b32 s%d, s%d, 11" % (sT1, sW4))
    a("s_add_u32 s%d, s%d, s%d" % (sT0, sT0, sT1))
    a("s_lshl_b32 s%d, s%d, 4" % (sT1, sH))
    a("s_add_u32 s%d, s%d, s%d" % (sT0, sT0, sT1))
    if QA_OFF:
        a("s_add_u32 s%d, s%d, %d" % (sT0, sT0, QA_OFF))
    a("s_nop 3")
    for k in range(8):
        a("v_add_f32_dpp v%d, v%d, v%d row_ror:8 row_mask:0xf bank_mask:0xf" % (D2 + k, D2 + k, D2 + k))
    for k in range(8):
        a("v_add_f32_dpp v%d, v%d, v%d row_ror:4 row_mask:0xf bank_mask:0xf" % (D2 + k, D2 + k, D2 + k))
    for k in range(8):
        a("v_mul_f32 v%d, s%d, v%d" % (D2 + k, sSC, D2 + k))
    for k in range(4):
        a("v_cvt_pk_bf16_f32 v%d, v%d, v%d" % (E + k, D2 + 2 * k, D2 + 2 * k + 1))
    a("s_mov_b32 exec_lo, 0x000f000f")
    a("s_mov_b32 exec_hi, 0x000f000f")
    for rt in range(2):
        a("buffer_store_dwordx2 %s, v%d, s[%d:%d], s%d offen offset:%d sc1" % (vr(E + 2 * rt, 2), vQAO, sWS, sWS + 3, sT0, 1024 * rt))
    a("s_mov_b64 exec, -1")
    stamp("A")
    seq_set(2)
    ln = a.newlabel("L_non")
    lnd = a.newlabel("L_nond")
    a.label(ln)
    a("s_waitcnt vmcnt(0)")
    a("v_readfirstlane_b32 s%d, v%d" % (sMSK, vNON))
    a("s_cmp_lg_u32 s%d, 0" % sMSK)
    a("s_cbranch_scc1 %s" % lnd)
    a("s_sub_u32 s%d, s%d, 1" % (sTO, sTO))
    a("s_cbranch_scc1 L_end")
    a("s_sleep %d" % SLP)
    a("buffer_load_dword v%d, v%d, s[%d:%d], 0 offen sc1" % (vNON, vPOLL, sDBG, sDBG + 3))
    a("s_branch %s" % ln)
    a.label(lnd)
    vm.ops = []
    seq_wait(SEQP, 1, 1)
    a("s_lshl_b32 s%d, s%d, 2" % (sT0, sP))
    a("s_add_u32 s%d, s%d, s%d" % (sT0, sT0, sCQ))
    a("s_lshl_b32 s%d, s%d, 2" % (sT0, sT0))
    a("s_add_u32 s%d, s%d, s%d" % (sT0, sT0, sW4))
    a("s_lshl_b32 s%d, s%d, 5" % (sT0, sT0))
    a("s_add_u32 s%d, s%d, s%d" % (sT0, sT0, sH))
    a("s_lshl_b32 s%d, s%d, 2" % (sT0, sT0))
    a("s_add_u32 s%d, s%d, %d" % (sT0, sT0, FQ_OFF))
    a("s_mov_b64 exec, 1")
    a("buffer_store_dword v%d, v%d, s[%d:%d], s%d offen sc1" % (vNON, vPOLL, sWS, sWS + 3, sT0))
    a("s_mov_b64 exec, -1")
    stamp("A")
    QR, QT = 32, 96
    vQW, vQRD, vL32 = 15, 16, 31
    a("s_lshl_b32 s%d, s%d, 2" % (sT0, sAP))
    a("s_add_u32 s%d, s%d, s%d" % (sT0, sT0, sAB))
    a("s_lshl_b32 s%d, s%d, 15" % (sK, sT0))
    if QA_OFF:
        a("s_add_u32 s%d, s%d, %d" % (sK, sK, QA_OFF))
    a("s_lshl_b32 s%d, s%d, 13" % (sT1, sW4))
    a("s_add_u32 s%d, s%d, s%d" % (sK + 1, sK, sT1))
    a("s_add_u32 s%d, s%d, %d" % (sK + 1, sK + 1, NQREG * 1024))
    a("s_add_u32 s%d, s%d, 4096" % (sK + 2, sK + 1))
    a("s_lshl_b32 s%d, s%d, 11" % (sK + 3, sAP))
    a("s_add_u32 s%d, s%d, %d" % (sK + 3, sK + 3, FQ_OFF))
    a("s_add_u32 s%d, s%d, %d" % (sT1, sT1, QL))
    a("v_add_u32 v%d, s%d, v%d" % (vQW, sT1, vL16))
    a("v_add_u32 v%d, %d, v%d" % (vQRD, QL, vL16))
    vCA = 80
    vKEY, vG2, vF = 17, 18, 19
    a("v_and_b32 v%d, 31, v%d" % (vKEY, vL))
    a("v_lshrrev_b32 v%d, 5, v%d" % (vG2, vL))
    a("v_and_b32 v%d, 3, v%d" % (vF, vKEY))
    a("v_bfe_u32 v%d, v%d, 2, 2" % (vTMP, vKEY))
    a("v_lshl_add_u32 v%d, v%d, 2, v%d" % (vF, vF, vTMP))
    a("v_xor_b32 v%d, v%d, v%d" % (vF, vF, vG2))
    a("s_lshl_b32 s%d, s%d, 15" % (sT1, sW4))
    a("v_lshlrev_b32 v%d, 10, v%d" % (vTMP, vKEY))
    a("v_add_u32 v%d, s%d, v%d" % (vTMP, sT1, vTMP))
    for s8 in range(8):
        a("v_xor_b32 v%d, %d, v%d" % (vTMP + 1, 2 * s8, vF))
        a("v_lshl_add_u32 v%d, v%d, 4, v%d" % (vCA + s8, vTMP + 1, vTMP))
    vM, vM2, vLS = 20, 21, 22
    vMXA, vPW, vPR = 23, 24, 25
    a("v_lshlrev_b32 v%d, 4, v%d" % (vMXA, vKEY))
    a("v_add_u32 v%d, %d, v%d" % (vMXA, MX, vMXA))
    a("s_lshl_b32 s%d, s%d, 2" % (sT0, sW4))
    a("v_add_u32 v26, s%d, v%d" % (sT0, vMXA))
    a("v_mul_u32_u24 v%d, 272, v%d" % (vPR, vKEY))
    a("v_add_u32 v%d, %d, v%d" % (vPR, PL, vPR))
    a("s_lshl_b32 s%d, s%d, 6" % (sT0, sW4))
    a("v_lshl_add_u32 v%d, v%d, 3, v%d" % (vPW, vG2, vPR))
    a("v_add_u32 v%d, s%d, v%d" % (vPW, sT0, vPW))
    a("v_lshl_add_u32 v%d, v%d, 4, v%d" % (vPR, vG2, vPR))
    vTA = 88
    vLAM, vGAM = 240, 241
    a("v_bfe_u32 v%d, v%d, 4, 1" % (vGAM, vL))
    a("v_lshrrev_b32 v%d, 2, v%d" % (vLAM, vC16))
    a("v_lshl_add_u32 v%d, v%d, 3, v%d" % (vTMP, vG2, vLAM))
    a("v_lshlrev_b32 v%d, 10, v%d" % (vTMP, vTMP))
    a("v_and_b32 v%d, 1, v%d" % (vTMP + 1, vC16))
    a("v_lshl_add_u32 v%d, v%d, 3, v%d" % (vTMP, vTMP + 1, vTMP))
    a("s_lshl_b32 s%d, s%d, 8" % (sT0, sW4))
    a("v_add_u32 v%d, s%d, v%d" % (vTMP, sT0, vTMP))
    a("v_bfe_u32 v%d, v%d, 1, 1" % (vTMP + 1, vC16))
    a("v_lshl_add_u32 v%d, v%d, 1, v%d" % (vTMP + 1, vGAM, vTMP + 1))
    a("v_lshlrev_b32 v242, 1, v%d" % vG2)
    a("v_xor_b32 v%d, v%d, v242" % (vTMP + 1, vTMP + 1))
    for ct in range(4):
        for e in range(2):
            a("v_xor_b32 v242, %d, v%d" % (ct, vLAM))
            a("v_lshl_add_u32 v242, v242, 2, v%d" % (vTMP + 1))
            if e:
                a("v_xor_b32 v242, 1, v242")
            a("v_lshl_add_u32 v%d, v242, 4, v%d" % (vTA + 2 * ct + e, vTMP))
            if e:
                a("v_add_u32 v%d, 4096, v%d" % (vTA + 2 * ct + e, vTA + 2 * ct + e))
    vIL = 243
    vOW, vOR, vOG = 27, 28, 29
    a("s_mul_i32 s%d, s%d, 4608" % (sT0, sW4))
    a("s_add_u32 s%d, s%d, %d" % (sT0, sT0, OST))
    a("v_mul_u32_u24 v%d, 144, v%d" % (vOW, vKEY))
    a("v_lshl_add_u32 v%d, v%d, 3, v%d" % (vOW, vG2, vOW))
    a("v_add_u32 v%d, s%d, v%d" % (vOW, sT0, vOW))
    a("v_lshrrev_b32 v%d, 3, v%d" % (vTMP, vL))
    a("v_and_b32 v%d, 7, v%d" % (vTMP + 1, vL))
    a("v_mul_u32_u24 v%d, 144, v%d" % (vOR, vTMP))
    a("v_lshl_add_u32 v%d, v%d, 4, v%d" % (vOR, vTMP + 1, vOR))
    a("v_add_u32 v%d, s%d, v%d" % (vOR, sT0, vOR))
    a("v_lshlrev_b32 v%d, 17, v%d" % (vOG, vTMP))
    a("v_lshl_add_u32 v%d, v%d, 4, v%d" % (vOG, vTMP + 1, vOG))
    a("s_lshl_b32 s%d, s%d, 22" % (sT0, sAP))
    a("s_lshl_b32 s%d, s%d, 15" % (sT1, sW4))
    a("s_add_u32 s%d, s%d, s%d" % (sT0, sT0, sT1))
    a("s_lshl_b32 s%d, s%d, 13" % (sT1, sAB))
    a("s_add_u32 s%d, s%d, s%d" % (sT0, sT0, sT1))
    a("s_lshl_b32 s%d, s%d, 8" % (sT1, sAS))
    a("s_add_u32 s%d, s%d, s%d" % (sT0, sT0, sT1))
    a("s_add_u32 s%d, s%d, %d" % (sOP, sT0, OP_OFF))
    for u in range(1, 4):
        a("s_add_u32 s%d, s%d, %d" % (sOP + u, sOP, u * 8 * 131072))
    seq_wait(SEQA, 2)
    seq_wait(0, 1, vaddr=vSBO)
    stamp("A")
    a.c("---- wave 0 polls the q flags, then everyone loads Q")
    l_n0 = a.newlabel("L_notw0")
    l_j0 = a.newlabel("L_join")
    a("s_cmp_lg_u32 s%d, 0" % sW4)
    a("s_cbranch_scc1 %s" % l_n0)
    lq = a.newlabel("L_q")
    lqd = a.newlabel("L_qd")
    a.label(lq)
    for hf in range(2):
        a("buffer_load_dwordx4 %s, v%d, s[%d:%d], s%d offen offset:%d sc1" % (vr(QT + 4 * hf, 4), vL16, sWS, sWS + 3, sK + 3, 1024 * hf))
    a("s_waitcnt vmcnt(0)")
    for k in range(8):
        a("v_xor_b32 v%d, s%d, v%d" % (QT + k, sMSK, QT + k))
    a("v_or3_b32 v%d, v%d, v%d, v%d" % (vTMP, QT, QT + 1, QT + 2))
    a("v_or3_b32 v%d, v%d, v%d, v%d" % (vTMP, vTMP, QT + 3, QT + 4))
    a("v_or3_b32 v%d, v%d, v%d, v%d" % (vTMP, vTMP, QT + 5, QT + 6))
    a("v_or_b32 v%d, v%d, v%d" % (vTMP, vTMP, QT + 7))
    a("v_cmp_ne_u32 vcc, 0, v%d" % vTMP)
    a("s_cbranch_vccz %s" % lqd)
    a("s_sub_u32 s%d, s%d, 1" % (sTO, sTO))
    a("s_cbranch_scc1 L_end")
    a("s_sleep %d" % SLP)
    a("s_branch %s" % lq)
    a.label(lqd)
    seq_set_at(SEQG, 1)
    a("s_branch %s" % l_j0)
    a.label(l_n0)
    seq_wait(SEQG, 1, 1)
    a.label(l_j0)
    stamp("A")
    for st in range(NQREG):
        a("buffer_load_dwordx4 %s, v%d, s[%d:%d], s%d offen offset:%d %s" % (vr(QR + 4 * st, 4), vL16, sWS, sWS + 3, sK, 1024 * st, QPOL))
    for i in range(6):
        a("buffer_load_dwordx4 %s, v%d, s[%d:%d], s%d offen offset:%d %s" % (vr(QT + 4 * i, 4), vL16, sWS, sWS + 3, sK + 1 + (i >> 2), 1024 * (i & 3), QPOL))
    l3 = a.newlabel("L_w3")
    a("s_cmp_eq_u32 s%d, 3" % sW4)
    a("s_cbranch_scc1 %s" % l3)
    for i in range(6, 8):
        a("buffer_load_dwordx4 %s, v%d, s[%d:%d], s%d offen offset:%d %s" % (vr(QT + 4 * i, 4), vL16, sWS, sWS + 3, sK + 1 + (i >> 2), 1024 * (i & 3), QPOL))
    a("s_waitcnt vmcnt(0)")
    for i in range(6, 8):
        a("ds_write_b128 v%d, %s offset:%d" % (vQW, vr(QT + 4 * i, 4), 1024 * i))
    a.label(l3)
    a("s_waitcnt vmcnt(0)")
    for i in range(6):
        a("ds_write_b128 v%d, %s offset:%d" % (vQW, vr(QT + 4 * i, 4), 1024 * i))
    a("s_waitcnt lgkmcnt(0)")
    vm.ops = []
    seq_set(3)
    seq_wait(SEQA, 3)
    stamp("A")
    seq_wait(0, 2, vaddr=vSBO)
    stamp("A")
    a.c("---- QK^T")
    S = 208
    CF, QFR = 48, 64
    DEPTH = 4
    nout = []

    def qk_issue(st):
        n = 1
        a("ds_read_b128 %s, v%d offset:%d" % (vr(CF + 4 * (st % DEPTH), 4), vCA + (st & 7), 256 * (st >> 3)))
        if st >= NQREG:
            a("ds_read_b128 %s, v%d offset:%d" % (vr(QFR + 4 * (st % DEPTH), 4), vQRD, 1024 * (st - NQREG)))
            n = 2
        nout.append(n)

    for st in range(DEPTH):
        qk_issue(st)
    for st in range(32):
        pend = sum(nout[st + 1:])
        a("s_waitcnt lgkmcnt(%d)" % pend)
        qb = vr(QR + 4 * st, 4) if st < NQREG else vr(QFR + 4 * (st % DEPTH), 4)
        a("v_mfma_f32_32x32x16_bf16 %s, %s, %s, %s" % (vr(S, 16), vr(CF + 4 * (st % DEPTH), 4), qb, "0" if st == 0 else vr(S, 16)))
        if st + DEPTH < 32:
            qk_issue(st + DEPTH)
    a.c("---- softmax")
    a("s_nop 15")
    a("v_max3_f32 v%d, v%d, v%d, v%d" % (vM, S, S + 1, S + 2))
    for k in range(3, 15, 2):
        a("v_max3_f32 v%d, v%d, v%d, v%d" % (vM, vM, S + k, S + k + 1))
    a("v_max_f32 v%d, v%d, v%d" % (vM, vM, S + 15))
    a("v_mov_b32 v%d, v%d" % (vM2, vM))
    a("s_nop 1")
    a("v_permlane32_swap_b32 v%d, v%d" % (vM, vM2))
    a("v_max_f32 v%d, v%d, v%d" % (vM, vM, vM2))
    a("ds_write_b32 v26, v%d" % vM)
    a("s_waitcnt lgkmcnt(0)")
    stamp("A")
    seq_set(4)
    seq_wait(SEQA, 4)
    a("ds_read_b128 v[48:51], v%d" % vMXA)
    a("s_waitcnt lgkmcnt(0)")
    a("v_max3_f32 v%d, v48, v49, v50" % vM)
    a("v_max_f32 v%d, v%d, v51" % (vM, vM))
    for k in range(16):
        a("v_sub_f32 v%d, v%d, v%d" % (S + k, S + k, vM))
    for k in range(16):
        a("v_exp_f32 v%d, v%d" % (S + k, S + k))
    a("s_nop 0")
    for ig in range(4):
        a("v_cvt_pk_bf16_f32 v%d, v%d, v%d" % (48 + 2 * ig, S + 4 * ig, S + 4 * ig + 1))
        a("v_cvt_pk_bf16_f32 v%d, v%d, v%d" % (49 + 2 * ig, S + 4 * ig + 2, S + 4 * ig + 3))
        a("ds_write_b64 v%d, %s offset:%d" % (vPW, vr(48 + 2 * ig, 2), 16 * ig))
    a("v_add_f32 v%d, v%d, v%d" % (vLS, S, S + 1))
    for k in range(2, 16):
        a("v_add_f32 v%d, v%d, v%d" % (vLS, vLS, S + k))
    a("v_mov_b32 v%d, v%d" % (vM2, vLS))
    a("s_nop 1")
    a("v_permlane32_swap_b32 v%d, v%d" % (vLS, vM2))
    a("v_add_f32 v%d, v%d, v%d" % (vLS, vLS, vM2))
    a("ds_write_b32 v26, v%d offset:%d" % (vLS, LP - MX))
    a("s_waitcnt lgkmcnt(0)")
    seq_set(5)
    seq_wait(SEQA, 5)
    stamp("A")
    a.c("---- PV (two passes, epilogue of pass 0 under pass 1)")
    O = 96
    PF = 48
    AF = 160
    OB = 176
    RB = 192
    lds = []

    def L(tag, txt):
        a(txt)
        lds.append(tag)

    def lwait(tag):
        idx = max(i for i, t in enumerate(lds) if t == tag)
        n = len(lds) - 1 - idx
        a("s_waitcnt lgkmcnt(%d)" % min(n, 15))

    def pv_issue(r, ks):
        buf = ks & 1
        L("p%d_%d" % (r, ks), "ds_read_b128 %s, v%d offset:%d" % (vr(PF + 4 * buf, 4), vPR, 32 * ks))
        for c2 in range(2):
            ct = 2 * r + c2
            for e in range(2):
                L("a%d_%d_%d" % (r, ks, c2), "ds_read_b64_tr_b16 %s, v%d offset:%d" % (vr(AF + 8 * buf + 4 * c2 + 2 * e, 2), vTA + 2 * ct + e, 16384 * (ks & 3)))

    def ep_cvt(r, c2, ig):
        ct = 2 * r + c2
        d = OB + 8 * c2 + 2 * ig
        a("v_cvt_pk_bf16_f32 v%d, v%d, v%d" % (d, O + 16 * ct + 4 * ig, O + 16 * ct + 4 * ig + 1))
        a("v_cvt_pk_bf16_f32 v%d, v%d, v%d" % (d + 1, O + 16 * ct + 4 * ig + 2, O + 16 * ct + 4 * ig + 3))
        L("w%d" % r, "ds_write_b64 v%d, %s offset:%d" % (vOW, vr(d, 2), 64 * c2 + 16 * ig))

    def ep_read(r, u):
        L("r%d_%d" % (r, u), "ds_read_b128 %s, v%d offset:%d" % (vr(RB + 4 * u, 4), vOR, 8 * 144 * u))

    def ep_store(r, u):
        lwait("r%d_%d" % (r, u))
        a("buffer_store_dwordx4 %s, v%d, s[%d:%d], s%d offen offset:%d sc1" % (vr(RB + 4 * u, 4), vOG, sWS, sWS + 3, sOP + u, 128 * r))

    L("lp", "ds_read_b128 v[56:59], v%d offset:%d" % (vMXA, LP - MX))
    pv_issue(0, 0)
    for r in range(2):
        for ks in range(8):
            buf = ks & 1
            if ks + 1 < 8:
                if ks + 1 == 4:
                    for k in range(4):
                        a("v_add_u32 v%d, 0x10000, v%d" % (vTA + 4 * r + k, vTA + 4 * r + k))
                pv_issue(r, ks + 1)
            elif r == 0:
                pv_issue(1, 0)
            for c2 in range(2):
                ct = 2 * r + c2
                lwait("a%d_%d_%d" % (r, ks, c2))
                a("v_mfma_f32_32x32x16_bf16 %s, %s, %s, %s" % (vr(O + 16 * ct, 16), vr(AF + 8 * buf + 4 * c2, 4), vr(PF + 4 * buf, 4),
                                                             "0" if ks == 0 else vr(O + 16 * ct, 16)))
                if r == 1:
                    if ks in (1, 2):
                        ep_cvt(0, ks - 1, 2 * c2)
                        ep_cvt(0, ks - 1, 2 * c2 + 1)
                    if ks == 3:
                        if c2 == 0:
                            lwait("w0")
                        ep_read(0, 2 * c2)
                        ep_read(0, 2 * c2 + 1)
                    if ks == 5:
                        ep_store(0, 2 * c2)
                        ep_store(0, 2 * c2 + 1)
    a.c("---- O epilogue (pass 1)")
    stamp("A")
    a("v_add_f32 v%d, v56, v57" % vLS)
    a("v_add_f32 v58, v58, v59")
    a("v_add_f32 v%d, v%d, v58" % (vLS, vLS))
    a("s_nop 7")
    for ig in range(4):
        ep_cvt(1, 0, ig)
    for ig in range(4):
        ep_cvt(1, 1, ig)
    lwait("w1")
    for u in range(4):
        ep_read(1, u)
    for u in range(4):
        ep_store(1, u)
    stamp("A")
    a("s_lshl_b32 s%d, s%d, 17" % (sT0, sAP))
    a("s_lshl_b32 s%d, s%d, 10" % (sT1, sW4))
    a("s_add_u32 s%d, s%d, s%d" % (sT0, sT0, sT1))
    a("s_lshl_b32 s%d, s%d, 8" % (sT1, sAB))
    a("s_add_u32 s%d, s%d, s%d" % (sT0, sT0, sT1))
    a("s_lshl_b32 s%d, s%d, 3" % (sT1, sAS))
    a("s_add_u32 s%d, s%d, s%d" % (sT0, sT0, sT1))
    a("s_add_u32 s%d, s%d, %d" % (sT0, sT0, ST_OFF))
    a("v_lshlrev_b32 v15, 12, v%d" % vKEY)
    a("v_mov_b32 v60, v%d" % vM)
    a("v_mov_b32 v61, v%d" % vLS)
    a("s_mov_b64 exec, 0xffffffff")
    a("s_waitcnt vmcnt(0)")
    a("buffer_store_dwordx2 v[60:61], v15, s[%d:%d], s%d offen sc1" % (sWS, sWS + 3, sT0))
    a("s_mov_b64 exec, -1")
    seq_set(6)
    stamp("A")
    a.c("---- combine (b = a)")
    OL, SM = 48, 80
    a("s_lshl_b32 s%d, s%d, 5" % (sT0, sP))
    a("s_add_u32 s%d, s%d, s%d" % (sT0, sT0, sH))
    a("s_lshl_b32 s%d, s%d, 2" % (sT1, sT0))
    a("s_add_u32 s%d, s%d, s%d" % (sT1, sT1, sCQ))
    a("s_lshl_b32 s%d, s%d, 2" % (sT1, sT1))
    a("s_add_u32 s%d, s%d, s%d" % (sT1, sT1, sW4))
    a("s_lshl_b32 s%d, s%d, 8" % (sT2, sT1))
    a("s_add_u32 s%d, s%d, %d" % (sT2, sT2, ST_OFF))
    a("s_lshl_b32 s%d, s%d, 13" % (sT1, sT1))
    a("s_add_u32 s%d, s%d, %d" % (sT1, sT1, OP_OFF))
    a("v_lshlrev_b32 v15, 6, v%d" % vG)
    a("v_lshlrev_b32 v16, 11, v%d" % vG)
    a("v_lshl_add_u32 v16, v%d, 4, v16" % vC16)
    ls = a.newlabel("L_st")
    lsd = a.newlabel("L_std")
    a.label(ls)
    for v4 in range(4):
        a("buffer_load_dwordx4 %s, v15, s[%d:%d], s%d offen offset:%d sc1" % (vr(SM + 4 * v4, 4), sWS, sWS + 3, sT2, 16 * v4))
    a("s_waitcnt vmcnt(0)")
    a("v_max3_u32 v%d, v%d, v%d, v%d" % (vTMP, SM, SM + 1, SM + 2))
    for k in range(3, 15, 2):
        a("v_max3_u32 v%d, v%d, v%d, v%d" % (vTMP, vTMP, SM + k, SM + k + 1))
    a("v_max_u32 v%d, v%d, v%d" % (vTMP, vTMP, SM + 15))
    a("v_cmp_eq_u32 vcc, -1, v%d" % vTMP)
    a("s_cbranch_vccz %s" % lsd)
    a("s_sub_u32 s%d, s%d, 1" % (sTO, sTO))
    a("s_cbranch_scc1 L_end")
    a("s_sleep %d" % SLP2)
    a("s_branch %s" % ls)
    a.label(lsd)
    vm.ops = []
    for u in range(8):
        a("buffer_load_dwordx4 %s, v16, s[%d:%d], s%d offen offset:%d sc1" % (vr(OL + 4 * u, 4), sWS, sWS + 3, sT1, 256 * u))
        vm.issue("ol%d" % u)
    stamp("A")
    a("v_max3_f32 v%d, v%d, v%d, v%d" % (vM, SM, SM + 2, SM + 4))
    a("v_max3_f32 v%d, v%d, v%d, v%d" % (vM, vM, SM + 6, SM + 8))
    a("v_max3_f32 v%d, v%d, v%d, v%d" % (vM, vM, SM + 10, SM + 12))
    a("v_max_f32 v%d, v%d, v%d" % (vM, vM, SM + 14))
    a("v_mov_b32 v%d, v%d" % (vM2, vM))
    a("s_nop 1")
    a("v_permlane32_swap_b32 v%d, v%d" % (vM, vM2))
    a("v_max_f32 v%d, v%d, v%d" % (vM, vM, vM2))
    a("v_mov_b32 v%d, v%d" % (vM2, vM))
    a("s_nop 1")
    a("v_permlane16_swap_b32 v%d, v%d" % (vM, vM2))
    a("v_max_f32 v%d, v%d, v%d" % (vM, vM, vM2))
    for u in range(8):
        a("v_sub_f32 v%d, v%d, v%d" % (SM + 2 * u, SM + 2 * u, vM))
    for u in range(8):
        a("v_exp_f32 v%d, v%d" % (SM + 2 * u, SM + 2 * u))
    a("s_nop 0")
    a("v_mul_f32 v%d, v%d, v%d" % (vLS, SM, SM + 1))
    for u in range(1, 8):
        a("v_fmac_f32 v%d, v%d, v%d" % (vLS, SM + 2 * u, SM + 2 * u + 1))
    a("v_mov_b32 v%d, v%d" % (vM2, vLS))
    a("s_nop 1")
    a("v_permlane32_swap_b32 v%d, v%d" % (vLS, vM2))
    a("v_add_f32 v%d, v%d, v%d" % (vLS, vLS, vM2))
    a("v_mov_b32 v%d, v%d" % (vM2, vLS))
    a("s_nop 1")
    a("v_permlane16_swap_b32 v%d, v%d" % (vLS, vM2))
    a("v_add_f32 v%d, v%d, v%d" % (vLS, vLS, vM2))
    a("v_rcp_f32 v%d, v%d" % (vIL, vLS))
    a("s_nop 0")
    for u in range(8):
        a("v_mul_f32 v%d, v%d, v%d" % (SM + 2 * u, SM + 2 * u, vIL))
    CA = 96
    for u in range(8):
        vm.wait("ol%d" % u)
        for k in range(4):
            a("v_lshlrev_b32 v%d, 16, v%d" % (104 + 2 * k, OL + 4 * u + k))
            a("v_and_b32 v%d, 0xffff0000, v%d" % (105 + 2 * k, OL + 4 * u + k))
        for k in range(8):
            if u == 0:
                a("v_mul_f32 v%d, v%d, v%d" % (CA + k, 104 + k, SM))
            else:
                a("v_fmac_f32 v%d, v%d, v%d" % (CA + k, 104 + k, SM + 2 * u))
    a("s_nop 1")
    for k in range(4):
        a("v_permlane32_swap_b32 v%d, v%d" % (CA + k, CA + k + 4))
    for k in range(4):
        a("v_add_f32 v%d, v%d, v%d" % (CA + k, CA + k, CA + k + 4))
    a("s_nop 1")
    for k in range(2):
        a("v_permlane16_swap_b32 v%d, v%d" % (CA + k, CA + k + 2))
    for k in range(2):
        a("v_add_f32 v%d, v%d, v%d" % (CA + k, CA + k, CA + k + 2))
    a("v_cvt_pk_bf16_f32 v%d, v%d, v%d" % (CA, CA, CA + 1))
    a("s_mul_i32 s%d, s%d, 272" % (sT0, sW4))
    if CC:
        a("s_add_u32 s%d, s%d, %d" % (sT0, sT0, CC))
    a("v_lshlrev_b32 v15, 4, v%d" % vC16)
    a("v_lshl_add_u32 v15, v%d, 2, v15" % vG)
    a("v_add_u32 v15, s%d, v15" % sT0)
    seq_wait(SEQA, 6)
    a("ds_write_b32 v15, v%d" % CA)
    a("s_waitcnt lgkmcnt(0)")
    seq_set(7)
    stamp("A")
    a.c("---- final reduce (wave 0 only)")
    l_e = a.newlabel("L_aend")
    a("s_cmp_lg_u32 s%d, 0" % sW4)
    a("s_cbranch_scc1 %s" % l_e)
    FL = 48
    a("s_lshl_b32 s%d, s%d, 11" % (sT0, sCQ))
    a("s_lshl_b32 s%d, s%d, 10" % (sT1, sP))
    a("s_add_u32 s%d, s%d, s%d" % (sT0, sT0, sT1))
    a("s_lshl_b32 s%d, s%d, 5" % (sT1, sH))
    a("s_add_u32 s%d, s%d, s%d" % (sK, sT0, sT1))
    a("v_and_b32 v16, 3, v%d" % vL)
    a("v_lshl_add_u32 v16, v16, 2, v%d" % vG)
    a("v_lshlrev_b32 v16, 1, v16")
    seq_wait(SEQB, 4)
    lp = a.newlabel("L_fp")
    dn = a.newlabel("L_fpd")
    a.label(lp)
    for u in range(8):
        a("buffer_load_dwordx4 %s, v%d, s[%d:%d], s%d offen offset:%d sc1" % (vr(FL + 4 * u, 4), vL16, sWS, sWS + 3, sK2 + (u >> 2), 1024 * (u & 3)))
    for u in range(8):
        a("s_waitcnt vmcnt(%d)" % (7 - u))
        if u == 0:
            a("v_max3_u32 v15, v%d, v%d, v%d" % (FL, FL + 1, FL + 2))
            a("v_max_u32 v15, v15, v%d" % (FL + 3))
        else:
            a("v_max3_u32 v15, v15, v%d, v%d" % (FL + 4 * u, FL + 4 * u + 1))
            a("v_max3_u32 v15, v15, v%d, v%d" % (FL + 4 * u + 2, FL + 4 * u + 3))
            for k in range(4):
                a("v_add_f32 v%d, v%d, v%d" % (FL + k, FL + k, FL + 4 * u + k))
    a("v_cmp_eq_u32 vcc, -1, v15")
    a("s_cbranch_vccz %s" % dn)
    a("s_sub_u32 s%d, s%d, 1" % (sTO, sTO))
    a("s_cbranch_scc1 L_end")
    a("s_sleep %d" % SLP3)
    a("s_branch %s" % lp)
    a.label(dn)
    stamp("A")
    for k in range(4):
        a("v_add_f32_dpp v%d, v%d, v%d row_ror:8 row_mask:0xf bank_mask:0xf" % (FL + k, FL + k, FL + k))
    for k in range(4):
        a("v_add_f32_dpp v%d, v%d, v%d row_ror:4 row_mask:0xf bank_mask:0xf" % (FL + k, FL + k, FL + k))
    a("s_nop 1")
    a("v_permlane32_swap_b32 v%d, v%d" % (FL, FL + 2))
    a("v_permlane32_swap_b32 v%d, v%d" % (FL + 1, FL + 3))
    a("v_add_f32 v%d, v%d, v%d" % (FL, FL, FL + 2))
    a("v_add_f32 v%d, v%d, v%d" % (FL + 1, FL + 1, FL + 3))
    a("s_nop 1")
    a("v_permlane16_swap_b32 v%d, v%d" % (FL, FL + 1))
    a("v_add_f32 v%d, v%d, v%d" % (FL, FL, FL + 1))
    a("v_cvt_pk_bf16_f32 v%d, v%d, v%d" % (FL, FL, FL))
    a("s_mov_b32 exec_lo, 0x000f000f")
    a("s_mov_b32 exec_hi, 0x000f000f")
    a("buffer_store_short v%d, v16, s[%d:%d], s%d offen" % (FL, sOUT, sOUT + 3, sK))
    a("s_mov_b64 exec, -1")
    stamp("A")
    stamp_flush("A")
    a.label(l_e)
    a("s_endpgm")

    a.label("L_B")
    vm = Vm(a)
    stamp("B")
    vL16b, vWVO, vWOO = 13, 9, 10
    a("v_lshlrev_b32 v%d, 4, v%d" % (vL16b, vL))
    a("s_lshl_b32 s%d, s%d, 22" % (sK, sAB))
    a("s_lshl_b32 s%d, s%d, 17" % (sT0, sAS))
    a("s_add_u32 s%d, s%d, s%d" % (sK, sK, sT0))
    a("s_lshl_b32 s%d, s%d, 15" % (sK + 1, sW4))
    a("s_add_u32 s%d, s%d, s%d" % (sK, sK, sK + 1))
    a("v_lshlrev_b32 v%d, 16, v%d" % (vWVO, vG))
    a("v_lshl_add_u32 v%d, v%d, 4, v%d" % (vWVO, vC16, vWVO))
    a("s_lshl_b32 s%d, s%d, 18" % (sT0, sW4))
    a("v_add_u32 v%d, s%d, v%d" % (vWVO, sT0, vWVO))
    a("s_lshl_b32 s%d, s%d, 20" % (sK + 2, sCQ))
    a("s_lshl_b32 s%d, s%d, 8" % (sT0, sH))
    a("s_add_u32 s%d, s%d, s%d" % (sK + 2, sK + 2, sT0))
    a("v_lshlrev_b32 v%d, 13, v%d" % (vWOO, vG))
    a("v_lshl_add_u32 v%d, v%d, 4, v%d" % (vWOO, vC16, vWOO))
    a("s_lshl_b32 s%d, s%d, 8" % (sT0, sW4))
    a("v_add_u32 v%d, s%d, v%d" % (vWOO, sT0, vWOO))
    a("s_lshl_b32 s%d, s%d, 17" % (sT1, sH))
    for i in range(4):
        a(("s_add_u32 s%d, s%d, %d" % (sT0, sCQ, i)) if (ROT & 2) else ("s_mov_b32 s%d, %d" % (sT0, i)))
        a("s_and_b32 s%d, s%d, 3" % (sT0, sT0))
        a("s_lshl_b32 s%d, s%d, 15" % (sK2 + i, sT0))
        a("s_add_u32 s%d, s%d, s%d" % (sK2 + i, sK2 + i, sT1))
    a.c("---- sentinel prefill (wave 3 of B)")
    lnp = a.newlabel("L_nopf")
    a("v_mov_b32 v15, 0")
    a("s_cmp_lg_u32 s%d, 3" % sW4)
    a("s_cbranch_scc1 %s" % lnp)
    for k in range(4):
        a("v_mov_b32 v%d, -1" % (248 + k))
    a("s_lshl_b32 s%d, s%d, 7" % (sT0, sP))
    a("s_lshl_b32 s%d, s%d, 5" % (sT1, sCQ))
    a("s_add_u32 s%d, s%d, s%d" % (sT0, sT0, sT1))
    a("s_add_u32 s%d, s%d, s%d" % (sT0, sT0, sH))
    a("v_mov_b32 v15, s%d" % sT0)
    a("s_lshl_b32 s%d, s%d, 13" % (sT0, sT0))
    a("s_add_u32 s%d, s%d, %d" % (sT0, sT0, FP_OFF))
    a("s_add_u32 s%d, s%d, 4096" % (sT1, sT0))
    for k in range(8):
        a("buffer_store_dwordx4 v[248:251], v%d, s[%d:%d], s%d offen offset:%d sc1" % (vL16b, sWS, sWS + 3, sT1 if k >= 4 else sT0, 1024 * (k & 3)))
    a("s_lshl_b32 s%d, s%d, 5" % (sT0, sP))
    a("s_add_u32 s%d, s%d, s%d" % (sT0, sT0, sH))
    a("s_lshl_b32 s%d, s%d, 2" % (sT0, sT0))
    a("s_add_u32 s%d, s%d, s%d" % (sT0, sT0, sCQ))
    a("s_lshl_b32 s%d, s%d, 10" % (sT0, sT0))
    a("s_add_u32 s%d, s%d, %d" % (sT0, sT0, ST_OFF))
    a("buffer_store_dwordx4 v[248:251], v%d, s[%d:%d], s%d offen sc1" % (vL16b, sWS, sWS + 3, sT0))
    if BDELAY:
        a("s_waitcnt vmcnt(0)")
        seq_set_at(SEQP, 1)
    a.label(lnp)
    if BDELAY:
        seq_wait(SEQA, 1)
    BUF = [32 + 32 * k for k in range(6)]
    state = {"ckv_sig": False, "nblk": 0, "pf": bool(BDELAY), "trig": False}

    def progress(n):
        done = vm.done_upto(n)
        if not state["pf"]:
            state["pf"] = True
            l2 = a.newlabel("L_nopf2")
            a("s_cmp_lg_u32 s%d, 3" % sW4)
            a("s_cbranch_scc1 %s" % l2)
            seq_set_at(SEQP, 1)
            a.label(l2)
        if not state["trig"] and sum(1 for t in vm.ops[:done + 1] if t == "ckv") >= QTRIG:
            state["trig"] = True
            seq_set(1)
        if not state["ckv_sig"]:
            idx = [i for i, t in enumerate(vm.ops) if t == "ckv"]
            if len(idx) == 32 and done >= idx[-1]:
                seq_set(2)
                stamp("B")
                state["ckv_sig"] = True
        while state["nblk"] < 5:
            k = state["nblk"]
            idx = [i for i, t in enumerate(vm.ops) if t == "blk%d" % k]
            if len(idx) == 8 and done >= idx[-1]:
                perm_block_to(BUF[k], BUF[k + 1])
                state["nblk"] += 1
            else:
                break

    def window(w):
        if len(vm.ops) >= w:
            vm.waitn(w - 1)
            progress(w - 1)

    def ld_ckv(i):
        f = ((i & 3) << 2) | ((i >> 2) & 3)
        a("s_add_u32 m0, s%d, %d" % (sK + 1, i * 1024))
        a("s_add_u32 s%d, s%d, %d" % (sT0, sK, i * 1024))
        a("v_xor_b32 v%d, %d, v%d" % (vTMP, 16 * f, vL16b))
        a("buffer_load_dwordx4 v%d, s[%d:%d], s%d offen %s lds" % (vTMP, sCKV, sCKV + 3, sT0, CKV_POL))
        vm.issue("ckv")

    def ld_wuv(j, k):
        a("s_add_u32 s%d, s%d, %d" % (sT0, sK + 2, j * 8192))
        a("buffer_load_dwordx4 %s, v%d, s[%d:%d], s%d offen %s" % (vr(BUF[k + 1] + 4 * j, 4), vWVO, sWUV, sWUV + 3, sT0, CKV_POL))
        vm.issue("blk%d" % k)

    def ld_wo(i, j, k):
        a("s_add_u32 s%d, s%d, %d" % (sT0, sK2 + i, j * 1024))
        a("buffer_load_dwordx4 %s, v%d, s[%d:%d], s%d offen %s" % (vr(BUF[k + 1] + 4 * j, 4), vWOO, sWO, sWO + 3, sT0, WO_POL))
        vm.issue("blk%d" % k)

    if ILV:
        for i in range(32):
            ld_ckv(i)
            window(WB)
            ld_wo(i >> 3, i & 7, i >> 3)
            window(WB)
        for j in range(8):
            ld_wuv(j, 4)
            window(WB2)
        BWUV, BWO = BUF[4], BUF[0:4]
    else:
        for i in range(32):
            ld_ckv(i)
            window(WB)
        for j in range(8):
            ld_wuv(j, 0)
            window(WB2)
        for i in range(4):
            for j in range(8):
                ld_wo(i, j, i + 1)
                window(WB2)
        BWUV, BWO = BUF[0], BUF[1:5]
    for n in range((WB2 - 1) // 8 * 8, -1, -8):
        vm.waitn(n)
        progress(n)
    assert state["nblk"] == 5 and state["ckv_sig"]
    stamp("B")
    if CUT:
        stamp_flush("B")
        a("s_endpgm")
    a.c("---- phase 4")
    vCR, vXW, vXR = 11, 12, 14
    a("v_mul_u32_u24 v%d, 272, v%d" % (vCR, vC16))
    a("v_lshl_add_u32 v%d, v%d, 4, v%d" % (vCR, vG, vCR))
    a("v_mov_b32 v%d, v%d" % (vXR, vCR))
    a("s_lshl_b32 s%d, s%d, 6" % (sT0, sW4))
    if CC:
        a("s_add_u32 s%d, s%d, %d" % (sT0, sT0, CC))
    a("v_add_u32 v%d, s%d, v%d" % (vCR, sT0, vCR))
    a("v_mov_b32 v%d, %d" % (vTMP, ZERO))
    a("v_cmp_gt_u32 vcc, 4, v%d" % vC16)
    a("s_nop 1")
    a("v_cndmask_b32 v%d, v%d, v%d, vcc" % (vCR, vTMP, vCR))
    a("v_add_u32 v%d, %d, v%d" % (vXR, CX, vXR))
    a("s_mul_i32 s%d, s%d, %d" % (sT0, sW4, 4 * 272))
    a("s_add_u32 s%d, s%d, %d" % (sT0, sT0, CX))
    a("v_lshlrev_b32 v%d, 4, v%d" % (vXW, vC16))
    a("v_add_u32 v%d, s%d, v%d" % (vXW, sT0, vXW))
    vXA = 16
    for i in range(4):
        a(("s_add_u32 s%d, s%d, %d" % (sT0, sCQ, i)) if (ROT & 2) else ("s_mov_b32 s%d, %d" % (sT0, i)))
        a("s_and_b32 s%d, s%d, 3" % (sT0, sT0))
        a("s_lshl_b32 s%d, s%d, 6" % (sT0, sT0))
        a("v_add_u32 v%d, s%d, v%d" % (vXA + i, sT0, vXR))
    vFS = 20
    a("v_lshrrev_b32 v%d, 1, v%d" % (vTMP, vC16))
    a("v_lshl_add_u32 v%d, v%d, 5, v%d" % (vTMP, vG, vTMP))
    a("v_lshlrev_b32 v%d, 13, v%d" % (vFS, vTMP))
    a("v_and_b32 v%d, 1, v%d" % (vTMP, vC16))
    a("v_lshl_add_u32 v%d, v%d, 5, v%d" % (vFS, vTMP, vFS))
    a("s_lshl_b32 s%d, s%d, 20" % (sT0, sP))
    a("s_lshl_b32 s%d, s%d, 16" % (sT1, sW4))
    a("s_add_u32 s%d, s%d, s%d" % (sT0, sT0, sT1))
    a("s_lshl_b32 s%d, s%d, 11" % (sT1, sCQ))
    a("s_add_u32 s%d, s%d, s%d" % (sT0, sT0, sT1))
    a("s_lshl_b32 s%d, s%d, 6" % (sT1, sH))
    a("s_add_u32 s%d, s%d, s%d" % (sT0, sT0, sT1))
    a("s_add_u32 s%d, s%d, %d" % (sK + 3, sT0, FP_OFF))
    seq_wait(SEQA, 7)
    stamp("B")
    AFR = 24
    D4 = 192
    a("ds_read_b128 %s, v%d" % (vr(AFR, 4), vCR))
    a("s_waitcnt lgkmcnt(0)")
    for t in range(8):
        a("v_mfma_f32_16x16x32_bf16 %s, %s, %s, 0" % (vr(D4 + 4 * t, 4), vr(AFR, 4), vr(BWUV + 4 * t, 4)))
    a("s_nop 7")
    a("s_mov_b64 exec, 0xffff")
    E4 = 224
    for b in range(4):
        for u in range(4):
            a("v_cvt_pk_bf16_f32 v%d, v%d, v%d" % (E4 + 4 * b + u, D4 + 8 * u + b, D4 + 8 * u + 4 + b))
        a("ds_write_b128 v%d, %s offset:%d" % (vXW, vr(E4 + 4 * b, 4), 272 * b))
    a("s_mov_b64 exec, -1")
    a("s_waitcnt lgkmcnt(0)")
    seq_set(3)
    seq_wait(SEQB, 3)
    a.c("---- phase 5")
    XA = 224
    for i in range(4):
        a("ds_read_b128 %s, v%d" % (vr(XA + 4 * i, 4), vXA + i))
    for i in range(4):
        a("s_waitcnt lgkmcnt(%d)" % (3 - i))
        for t in range(8):
            a("v_mfma_f32_16x16x32_bf16 %s, %s, %s, %s" % (vr(D4 + 4 * t, 4), vr(XA + 4 * i, 4), vr(BWO[i] + 4 * t, 4),
                                                         "0" if i == 0 else vr(D4 + 4 * t, 4)))
    a("s_nop 7")
    for t in range(8):
        a("v_permlane32_swap_b32 v%d, v%d" % (D4 + 4 * t, D4 + 4 * t + 2))
        a("v_permlane32_swap_b32 v%d, v%d" % (D4 + 4 * t + 1, D4 + 4 * t + 3))
    for t in range(8):
        a("v_add_f32 v%d, v%d, v%d" % (D4 + 4 * t, D4 + 4 * t, D4 + 4 * t + 2))
        a("v_add_f32 v%d, v%d, v%d" % (D4 + 4 * t + 1, D4 + 4 * t + 1, D4 + 4 * t + 3))
    for t in range(8):
        a("v_permlane16_swap_b32 v%d, v%d" % (D4 + 4 * t, D4 + 4 * t + 1))
    for t in range(8):
        a("v_add_f32 v%d, v%d, v%d" % (XA + t, D4 + 4 * t, D4 + 4 * t + 1))
    a("buffer_store_dwordx4 %s, v%d, s[%d:%d], s%d offen sc1" % (vr(XA, 4), vFS, sWS, sWS + 3, sK + 3))
    a("buffer_store_dwordx4 %s, v%d, s[%d:%d], s%d offen offset:16 sc1" % (vr(XA + 4, 4), vFS, sWS, sWS + 3, sK + 3))
    seq_set(4)
    stamp("B")
    stamp_flush("B")
    a.label("L_end")
    a("s_endpgm")

    txt = HEADER
    txt += "; @launch grid=(256,1,1) block=(512,1,1) lds=%d\n" % LDS_BYTES
    txt += '.amdgcn_target "amdgcn-amd-amdhsa--gfx950"\n.text\n.globl %s_kernel\n.p2align 8\n.type %s_kernel,@function\n%s_kernel:\n' % (NAME, NAME, NAME)
    txt += "\n".join(a.l) + "\n"
    txt += """.section .rodata,"a"
.p2align 6
.amdhsa_kernel %s_kernel
  .amdhsa_next_free_vgpr 256
  .amdhsa_next_free_sgpr 102
  .amdhsa_accum_offset 256
  .amdhsa_group_segment_fixed_size 0
  .amdhsa_kernarg_size 120
  .amdhsa_user_sgpr_count 2
  .amdhsa_user_sgpr_kernarg_segment_ptr 1
  .amdhsa_system_sgpr_workgroup_id_x 1
.end_amdhsa_kernel
""" % NAME
    return txt


if __name__ == "__main__":
    import argparse
    ap = argparse.ArgumentParser()
    ap.add_argument("-o", default="cdna_kernels/%s.s" % NAME)
    ap.add_argument("--wb", type=int, default=8)
    ap.add_argument("--debug", action="store_true")
    ap.add_argument("--ckvpol", default="nt")
    ap.add_argument("--wpol", default="nt")
    ap.add_argument("--bdelay", action="store_true")
    ap.add_argument("--slp", type=int, default=4)
    ap.add_argument("--wb2", type=int, default=8)
    ap.add_argument("--qtrig", type=int, default=20)
    ap.add_argument("--qpol", default="")
    ap.add_argument("--map", type=int, default=0)
    ap.add_argument("--wopol", default="nt")
    ap.add_argument("--ilv", type=int, default=1)
    ap.add_argument("--slp2", type=int, default=4)
    ap.add_argument("--slp3", type=int, default=4)
    ap.add_argument("--rot", type=int, default=1)
    ap.add_argument("--cut", type=int, default=0)
    args = ap.parse_args()
    open(args.o, "w").write(gen(WB=args.wb, DEBUG=args.debug, CKV_POL=args.ckvpol, W_POL=args.wpol, BDELAY=args.bdelay, SLP=args.slp, ROT=args.rot, CUT=args.cut, WB2=args.wb2, QTRIG=args.qtrig, QPOL=args.qpol, MAP=args.map, WO_POL=args.wopol, ILV=args.ilv, SLP2=args.slp2, SLP3=args.slp3))
```

```python
import sys, struct

NAME = "concat_heads__compressed_kv_cla__compressed_kv_cla__decode"

HEADER = open("cdna_kernels/%s.s.ref" % NAME).read().split("; Override launch geometry")[0]

QA_OFF = 0x0
FQ_OFF = 0x70000
ST_OFF = 0x80000
OP_OFF = 0x100000
FP_OFF = 0x1000000
DBG_OFF = 0x2000000
WS_BYTES = 268435456

CKV = 0
QL = 131072
NQREG = 2
MISC = QL + (32 - NQREG) * 1024
SEQA = MISC
SEQB = MISC + 16
SEQG = MISC + 32
SEQP = MISC + 36
ZERO = MISC + 64
MX = MISC + 256
LP = MISC + 768
FIN = MISC + 1280
QS = QL
PL = QL
OST = QL + 8704
CC = 0
CX = 4096
LDS_BYTES = 163840


def f32bits(x):
    return struct.unpack("<I", struct.pack("<f", x))[0]


class Asm:
    def __init__(self):
        self.l = []
        self.nlab = 0

    def __call__(self, s):
        self.l.append("    " + s)

    def label(self, s):
        self.l.append(s + ":")

    def newlabel(self, p="L"):
        self.nlab += 1
        return "%s_%d" % (p, self.nlab)

    def c(self, s):
        self.l.append("    ; " + s)


class Vm:
    def __init__(self, a):
        self.a = a
        self.ops = []

    def issue(self, tag=None):
        self.ops.append(tag)

    def wait(self, tag):
        idx = max(i for i, t in enumerate(self.ops) if t == tag)
        n = len(self.ops) - 1 - idx
        self.a("s_waitcnt vmcnt(%d)" % min(n, 63))

    def waitn(self, n):
        self.a("s_waitcnt vmcnt(%d)" % min(n, 63))

    def done_upto(self, n):
        return len(self.ops) - 1 - n


def vr(b, n=1):
    return "v%d" % b if n == 1 else "v[%d:%d]" % (b, b + n - 1)


def sr(b, n=1):
    return "s%d" % b if n == 1 else "s[%d:%d]" % (b, b + n - 1)


sX, sCKV, sWQ, sWUK, sWUV, sWO, sOUT, sDBG, sWS = 36, 40, 44, 48, 52, 56, 60, 64, 68
sH, sP, sCQ, sWV = 72, 73, 74, 75
sW4 = 76
sT0, sT1, sT2, sT3 = 77, 78, 79, 80
sSELL, sSELH = 81, 82
sSC = 83
sTO = 84
sMSK = 85
sK = 86
sK2 = 90
sSTAMP = 4
sCLK = 94
sAP, sAB, sAS = 96, 97, 98
sDONE = 99
sOP = 32


def gen(WB=8, DEBUG=False, CKV_POL="nt", W_POL="nt", BDELAY=False, SLP=4, ROT=0, CUT=0, WB2=8, QTRIG=20, QPOL="", MAP=1, WO_POL="nt", ILV=1, SLP2=4, SLP3=4):
    a = Asm()
    stamp_n = {"A": 0, "B": 0}

    def stamp(role):
        if not DEBUG:
            return
        k = stamp_n[role]
        stamp_n[role] += 1
        assert k < 28
        a("s_memrealtime s[%d:%d]" % (sCLK, sCLK + 1))
        a("s_waitcnt lgkmcnt(0)")
        a("s_mov_b32 s%d, s%d" % (sSTAMP + k, sCLK))

    def stamp_flush(role):
        if not DEBUG:
            return
        lab = a.newlabel("L_nost")
        a("s_cmp_lg_u32 s%d, 0" % sW4)
        a("s_cbranch_scc1 %s" % lab)
        if DEBUG == 2:
            a("s_mov_b64 exec, 1")
            a("v_mov_b32 v250, 0")
            a("buffer_load_dword v249, v250, s[%d:%d], 0 offen sc1" % (sDBG, sDBG + 3))
            a("s_waitcnt vmcnt(0)")
            sel = {"A": [0, 1, 2, 3, 5, 6, 7, 11, 12, 13, 15, 16], "B": [1, 2, 4]}[role]
            base = {"A": 1, "B": 13}[role]
            for n, k in enumerate(sel):
                a("v_sub_u32 v251, s%d, v249" % (sSTAMP + k))
                a("v_add_u32 v251, 1000, v251")
                a("buffer_atomic_umax v251, v250, s[%d:%d], 0 offen offset:%d sc1" % (sDBG, sDBG + 3, 4 * (base + n)))
                a("s_nop 1")
            a("s_mov_b64 exec, -1")
            a.label(lab)
            return
        a("s_lshl_b32 s%d, s2, 8" % sT0)
        a("s_add_u32 s%d, s%d, %d" % (sT0, sT0, DBG_OFF + (128 if role == "B" else 0)))
        a("s_mov_b64 exec, 1")
        a("v_mov_b32 v250, 0")
        for k in range(stamp_n[role]):
            a("v_mov_b32 v251, s%d" % (sSTAMP + k))
            a("buffer_store_dword v251, v250, s[%d:%d], s%d offen offset:%d" % (sWS, sWS + 3, sT0, 4 * k))
            a("s_nop 1")
        a("s_mov_b64 exec, -1")
        a.label(lab)

    vTID, vL, vC16, vG = 0, 1, 2, 3
    vSEQ = 4
    vMISC = 5
    vTMP = 6
    vSW = 252

    def seq_set(val):
        a("v_mov_b32 v%d, %d" % (vTMP, val))
        a("ds_write_b32 v%d, v%d" % (vSEQ, vTMP))

    def seq_set_at(off, val):
        a("v_mov_b32 v%d, %d" % (vTMP, val))
        a("ds_write_b32 v%d, v%d offset:%d" % (vMISC, vTMP, off - MISC))

    def seq_wait(off, val, nwords=4, vaddr=None):
        lp = a.newlabel("L_sw")
        a.label(lp)
        if vaddr is not None:
            a("ds_read_b32 v%d, v%d" % (vSW, vaddr))
            a("s_waitcnt lgkmcnt(0)")
        elif nwords == 4:
            a("ds_read_b128 v[%d:%d], v%d offset:%d" % (vSW, vSW + 3, vMISC, off - MISC))
            a("s_waitcnt lgkmcnt(0)")
            a("v_min_u32 v%d, v%d, v%d" % (vSW, vSW, vSW + 1))
            a("v_min3_u32 v%d, v%d, v%d, v%d" % (vSW, vSW, vSW + 2, vSW + 3))
        else:
            a("ds_read_b32 v%d, v%d offset:%d" % (vSW, vMISC, off - MISC))
            a("s_waitcnt lgkmcnt(0)")
        a("s_sub_u32 s%d, s%d, 1" % (sTO, sTO))
        a("s_cbranch_scc1 L_end")
        a("v_readfirstlane_b32 s%d, v%d" % (sT3, vSW))
        a("s_cmp_ge_u32 s%d, %d" % (sT3, val))
        a("s_cbranch_scc0 %s" % lp)

    def gpoll(mask, vm):
        a("s_mov_b32 s%d, 0x%08x" % (sMSK, mask))
        lp = a.newlabel("L_gp")
        dn = a.newlabel("L_gpd")
        a.label(lp)
        a("buffer_load_dword v%d, v%d, s[%d:%d], 0 offen sc1" % (vTMP, vPOLL, sDBG, sDBG + 3))
        a("s_waitcnt vmcnt(0)")
        a("v_and_b32 v%d, s%d, v%d" % (vTMP, sMSK, vTMP))
        a("v_cmp_ne_u32 vcc, s%d, v%d" % (sMSK, vTMP))
        a("s_cbranch_vccz %s" % dn)
        a("s_sub_u32 s%d, s%d, 1" % (sTO, sTO))
        a("s_cbranch_scc1 L_end")
        a("s_sleep %d" % SLP)
        a("s_branch %s" % lp)
        a.label(dn)
        vm.ops = []

    def perm_block_to(dst, src):
        for u in range(4):
            for e in range(2):
                t = 2 * u + e
                for q in range(4):
                    a("v_perm_b32 v%d, v%d, v%d, s%d" % (dst + 4 * t + q, src + 4 * (2 * q + 1) + u,
                                                        src + 4 * (2 * q) + u, sSELH if e else sSELL))

    def perm_t(dst, src, t):
        u, e = t >> 1, t & 1
        for q in range(4):
            a("v_perm_b32 v%d, v%d, v%d, s%d" % (dst + q, src + 4 * (2 * q + 1) + u,
                                                src + 4 * (2 * q) + u, sSELH if e else sSELL))

    a("s_cmp_ge_u32 s2, 256")
    a("s_cbranch_scc1 L_end")
    a("s_load_dwordx16 s[4:19], s[0:1], 0")
    a("s_load_dwordx8 s[20:27], s[0:1], 64")
    a("s_load_dwordx4 s[28:31], s[0:1], 96")
    a("s_load_dwordx2 s[32:33], s[0:1], 112")
    a("v_lshrrev_b32 v6, 6, v0")
    a("v_and_b32 v%d, 63, v0" % vL)
    a("v_and_b32 v%d, 15, v0" % vC16)
    a("v_readfirstlane_b32 s%d, v6" % sWV)
    a("v_lshrrev_b32 v%d, 4, v%d" % (vG, vL))
    if MAP == 0:
        a("s_and_b32 s%d, s2, 31" % sH)
        a("s_bfe_u32 s%d, s2, 0x10005" % sP)
        a("s_lshr_b32 s%d, s2, 6" % sCQ)
    else:
        a("s_and_b32 s%d, s2, 1" % sP)
        a("s_bfe_u32 s%d, s2, 0x20001" % sH)
        a("s_lshl_b32 s%d, s%d, 3" % (sH, sH))
        a("s_bfe_u32 s%d, s2, 0x30003" % sCQ)
        a("s_add_u32 s%d, s%d, s%d" % (sH, sH, sCQ))
        a("s_lshr_b32 s%d, s2, 6" % sCQ)
    a("s_bfe_u32 s%d, s2, 0x10002" % sAP)
    a("s_and_b32 s%d, s2, 3" % sAB)
    a("s_lshr_b32 s%d, s2, 3" % sAS)
    a("s_and_b32 s%d, s%d, 3" % (sW4, sWV))
    a("s_mov_b32 s%d, 0x05040100" % sSELL)
    a("s_mov_b32 s%d, 0x07060302" % sSELH)
    a("s_mov_b32 s%d, 0x%08x" % (sSC, f32bits(128 ** -0.5 * 1.4426950408889634)))
    a("s_mov_b32 s%d, 0x400000" % sTO)
    a("v_lshlrev_b32 v7, 2, v0")
    a("v_add_u32 v7, %d, v7" % MISC)
    a("v_mov_b32 v8, 0")
    a("ds_write_b32 v7, v8")
    a("v_mov_b32 v%d, %d" % (vMISC, MISC))
    a("v_lshlrev_b32 v6, 2, v6")
    a("v_add_u32 v%d, %d, v6" % (vSEQ, MISC))
    a("s_waitcnt lgkmcnt(0)")
    a("s_cmp_eq_u32 s%d, 0" % sP)
    for k, (srd, nbytes) in enumerate([(sX, 4096), (sCKV, 16777216), (sWQ, 4194304), (sWUK, 4194304),
                                       (sWUV, 4194304), (sWO, 4194304)]):
        a("s_cselect_b64 s[%d:%d], s[%d:%d], s[%d:%d]" % (srd, srd + 1, 4 + 2 * k, 5 + 2 * k, 16 + 2 * k, 17 + 2 * k))
    a("s_cmp_eq_u32 s%d, 0" % sAP)
    a("s_cselect_b64 s[%d:%d], s[6:7], s[18:19]" % (sCKV, sCKV + 1))
    for k, (srd, nbytes) in enumerate([(sX, 4096), (sCKV, 16777216), (sWQ, 4194304), (sWUK, 4194304),
                                       (sWUV, 4194304), (sWO, 4194304)]):
        a("s_and_b32 s%d, s%d, 0xffff" % (srd + 1, srd + 1))
        a("s_mov_b32 s%d, %d" % (srd + 2, nbytes))
        a("s_mov_b32 s%d, 0x00020000" % (srd + 3))
    for srd, src, nbytes in [(sOUT, 28, 8192), (sDBG, 30, 256), (sWS, 32, WS_BYTES)]:
        a("s_mov_b32 s%d, s%d" % (srd, src))
        a("s_and_b32 s%d, s%d, 0xffff" % (srd + 1, src + 1))
        a("s_mov_b32 s%d, %d" % (srd + 2, nbytes))
        a("s_mov_b32 s%d, 0x00020000" % (srd + 3))
    a("s_barrier")
    a("s_cmp_ge_u32 s%d, 4" % sWV)
    a("s_cbranch_scc1 L_B")

    vm = Vm(a)
    vXO, vWQO, vWKO, vFPO, vPOLL, vL16 = 8, 9, 10, 11, 12, 13
    XF, WQ, WUK, ACC, T = 32, 48, 176, 208, 240
    stamp("A")
    a.c("---- nonce publish (WG 0, wave 0)")
    lnn = a.newlabel("L_nonon")
    a("v_mov_b32 v%d, 0" % vPOLL)
    a("s_or_b32 s%d, s2, s%d" % (sT0, sWV))
    a("s_cmp_lg_u32 s%d, 0" % sT0)
    a("s_cbranch_scc1 %s" % lnn)
    a("s_memrealtime s[%d:%d]" % (sCLK, sCLK + 1))
    a("s_waitcnt lgkmcnt(0)")
    a("s_or_b32 s%d, s%d, 1" % (sT0, sCLK))
    a("v_mov_b32 v%d, s%d" % (vTMP, sT0))
    a("s_mov_b64 exec, 1")
    a("buffer_store_dword v%d, v%d, s[%d:%d], 0 offen sc1" % (vTMP, vPOLL, sDBG, sDBG + 3))
    a("s_mov_b64 exec, -1")
    a.label(lnn)
    a.c("---- A: address setup")
    a("s_lshl_b32 s%d, s%d, 8" % (sT0, sW4))
    a("v_lshlrev_b32 v%d, 10, v%d" % (vXO, vC16))
    a("v_lshl_add_u32 v%d, v%d, 4, v%d" % (vXO, vG, vXO))
    a("v_add_u32 v%d, s%d, v%d" % (vXO, sT0, vXO))
    a("s_lshl_b32 s%d, s%d, 20" % (sT0, sW4))
    a("v_lshlrev_b32 v%d, 16, v%d" % (vWQO, vG))
    a("v_lshl_add_u32 v%d, v%d, 4, v%d" % (vWQO, vC16, vWQO))
    a("v_add_u32 v%d, s%d, v%d" % (vWQO, sT0, vWQO))
    a("s_lshl_b32 s%d, s%d, 18" % (sT0, sW4))
    a("v_lshlrev_b32 v%d, 13, v%d" % (vWKO, vC16))
    a("v_lshl_add_u32 v%d, v%d, 4, v%d" % (vWKO, vG, vWKO))
    a("v_add_u32 v%d, s%d, v%d" % (vWKO, sT0, vWKO))
    a("v_lshlrev_b32 v%d, 4, v0" % vFPO)
    a("v_lshlrev_b32 v%d, 4, v%d" % (vL16, vL))
    a("s_lshl_b32 s%d, s%d, 8" % (sT1, sH))
    for i in range(4):
        a(("s_add_u32 s%d, s%d, %d" % (sT0, sCQ, i)) if (ROT & 1) else ("s_mov_b32 s%d, %d" % (sT0, i)))
        a("s_and_b32 s%d, s%d, 3" % (sT0, sT0))
        a("s_lshl_b32 s%d, s%d, 6" % (sK2 + i, sT0))
        a("s_lshl_b32 s%d, s%d, 18" % (sK + i, sT0))
        a("s_add_u32 s%d, s%d, s%d" % (sK + i, sK + i, sT1))
    for i in range(4):
        a("buffer_load_dwordx4 %s, v%d, s[%d:%d], s%d offen" % (vr(XF + 4 * i, 4), vXO, sX, sX + 3, sK2 + i))
        vm.issue("x%d" % i)
    for i in range(4):
        for j in range(8):
            a("s_add_u32 s%d, s%d, %d" % (sT0, sK + i, j * 8192))
            a("buffer_load_dwordx4 %s, v%d, s[%d:%d], s%d offen %s" % (vr(WQ + 32 * i + 4 * j, 4), vWQO, sWQ, sWQ + 3, sT0, W_POL))
            vm.issue("wq%d" % i)
    a("s_lshl_b32 s%d, s%d, 20" % (sT0, sCQ))
    a("s_add_u32 s%d, s%d, s%d" % (sT0, sT0, sT1))
    a("s_add_u32 s%d, s%d, %d" % (sT2, sT0, 16 * 8192))
    for rt in range(2):
        for kk in range(4):
            a("buffer_load_dwordx4 %s, v%d, s[%d:%d], s%d offen offset:%d %s" % (
                vr(WUK + 16 * rt + 4 * kk, 4), vWKO, sWUK, sWUK + 3, sT2 if rt else sT0, 64 * kk, CKV_POL))
            vm.issue("wuk")
    a("s_lshl_b32 s%d, s%d, 7" % (sT0, sP))
    a("s_lshl_b32 s%d, s%d, 5" % (sT1, sCQ))
    a("s_add_u32 s%d, s%d, s%d" % (sT0, sT0, sT1))
    a("s_add_u32 s%d, s%d, s%d" % (sT0, sT0, sH))
    a("s_lshl_b32 s%d, s%d, 13" % (sT0, sT0))
    a("s_add_u32 s%d, s%d, %d" % (sK2, sT0, FP_OFF))
    a("s_add_u32 s%d, s%d, 4096" % (sK2 + 1, sK2))
    vSBO = 14
    a("v_add_u32 v%d, 16, v%d" % (vSBO, vSEQ))
    vNON = 30
    a("buffer_load_dword v%d, v%d, s[%d:%d], 0 offen sc1" % (vNON, vPOLL, sDBG, sDBG + 3))
    vm.issue("non")

    a.c("---- phase 1: q partial = x . w_q")
    for i in range(4):
        vm.wait("wq%d" % i)
        if i == 3:
            stamp("A")
        perm_t(T, WQ + 32 * i, 0)
        for t in range(8):
            if t + 1 < 8:
                perm_t(T + 4 * ((t + 1) & 1), WQ + 32 * i, t + 1)
            else:
                a("s_nop 1")
            a("v_mfma_f32_16x16x32_bf16 %s, %s, %s, %s" % (vr(ACC + 4 * t, 4), vr(XF + 4 * i, 4), vr(T + 4 * (t & 1), 4),
                                                         "0" if i == 0 else vr(ACC + 4 * t, 4)))
    if CUT == 1:
        a("s_waitcnt vmcnt(0)")
        stamp("A")
        stamp_flush("A")
        a("s_endpgm")
    vQSW, vQSR = 15, 16
    a("s_mul_i32 s%d, s%d, %d" % (sT0, sW4, 4 * 272))
    a("s_add_u32 s%d, s%d, %d" % (sT0, sT0, QS))
    a("v_lshlrev_b32 v%d, 4, v%d" % (vQSW, vC16))
    a("v_add_u32 v%d, s%d, v%d" % (vQSW, sT0, vQSW))
    a("v_mul_u32_u24 v%d, 272, v%d" % (vQSR, vC16))
    a("v_lshl_add_u32 v%d, v%d, 4, v%d" % (vQSR, vG, vQSR))
    a("v_add_u32 v%d, %d, v%d" % (vQSR, QS, vQSR))
    a("s_nop 3")
    a("s_mov_b64 exec, 0xffff")
    E = 48
    for b in range(4):
        for u in range(4):
            a("v_cvt_pk_bf16_f32 v%d, v%d, v%d" % (E + 4 * b + u, ACC + 8 * u + b, ACC + 8 * u + 4 + b))
        a("ds_write_b128 v%d, %s offset:%d" % (vQSW, vr(E + 4 * b, 4), 272 * b))
    a("s_mov_b64 exec, -1")
    a("s_waitcnt lgkmcnt(0)")
    seq_set(1)
    seq_wait(SEQA, 1)
    a.c("---- phase 2: q_abs = q . w_uk^T")
    QF = 32
    D2 = 208
    for kk in range(4):
        a("ds_read_b128 %s, v%d offset:%d" % (vr(QF + 4 * kk, 4), vQSR, 64 * kk))
    vm.wait("wuk")
    a("s_waitcnt lgkmcnt(0)")
    for kk in range(4):
        for rt in range(2):
            a("v_mfma_f32_16x16x32_bf16 %s, %s, %s, %s" % (vr(D2 + 4 * rt, 4), vr(WUK + 16 * rt + 4 * kk, 4), vr(QF + 4 * kk, 4),
                                                         "0" if kk == 0 else vr(D2 + 4 * rt, 4)))
    vQAO = 17
    a("v_lshlrev_b32 v%d, 15, v%d" % (vQAO, vC16))
    a("v_lshrrev_b32 v%d, 1, v%d" % (vTMP, vG))
    a("v_lshl_add_u32 v%d, v%d, 9, v%d" % (vQAO, vTMP, vQAO))
    a("v_and_b32 v%d, 1, v%d" % (vTMP, vG))
    a("v_lshl_add_u32 v%d, v%d, 3, v%d" % (vQAO, vTMP, vQAO))
    a("s_lshl_b32 s%d, s%d, 17" % (sT0, sP))
    a("s_lshl_b32 s%d, s%d, 13" % (sT1, sCQ))
    a("s_add_u32 s%d, s%d, s%d" % (sT0, sT0, sT1))
    a("s_lshl_b32 s%d, s%d, 11" % (sT1, sW4))
    a("s_add_u32 s%d, s%d, s%d" % (sT0, sT0, sT1))
    a("s_lshl_b32 s%d, s%d, 4" % (sT1, sH))
    a("s_add_u32 s%d, s%d, s%d" % (sT0, sT0, sT1))
    if QA_OFF:
        a("s_add_u32 s%d, s%d, %d" % (sT0, sT0, QA_OFF))
    a("s_nop 3")
    for k in range(8):
        a("v_add_f32_dpp v%d, v%d, v%d row_ror:8 row_mask:0xf bank_mask:0xf" % (D2 + k, D2 + k, D2 + k))
    for k in range(8):
        a("v_add_f32_dpp v%d, v%d, v%d row_ror:4 row_mask:0xf bank_mask:0xf" % (D2 + k, D2 + k, D2 + k))
    for k in range(8):
        a("v_mul_f32 v%d, s%d, v%d" % (D2 + k, sSC, D2 + k))
    for k in range(4):
        a("v_cvt_pk_bf16_f32 v%d, v%d, v%d" % (E + k, D2 + 2 * k, D2 + 2 * k + 1))
    a("s_mov_b32 exec_lo, 0x000f000f")
    a("s_mov_b32 exec_hi, 0x000f000f")
    for rt in range(2):
        a("buffer_store_dwordx2 %s, v%d, s[%d:%d], s%d offen offset:%d sc1" % (vr(E + 2 * rt, 2), vQAO, sWS, sWS + 3, sT0, 1024 * rt))
    a("s_mov_b64 exec, -1")
    stamp("A")
    seq_set(2)
    ln = a.newlabel("L_non")
    lnd = a.newlabel("L_nond")
    a.label(ln)
    a("s_waitcnt vmcnt(0)")
    a("v_readfirstlane_b32 s%d, v%d" % (sMSK, vNON))
    a("s_cmp_lg_u32 s%d, 0" % sMSK)
    a("s_cbranch_scc1 %s" % lnd)
    a("s_sub_u32 s%d, s%d, 1" % (sTO, sTO))
    a("s_cbranch_scc1 L_end")
    a("s_sleep %d" % SLP)
    a("buffer_load_dword v%d, v%d, s[%d:%d], 0 offen sc1" % (vNON, vPOLL, sDBG, sDBG + 3))
    a("s_branch %s" % ln)
    a.label(lnd)
    vm.ops = []
    seq_wait(SEQP, 1, 1)
    a("s_lshl_b32 s%d, s%d, 2" % (sT0, sP))
    a("s_add_u32 s%d, s%d, s%d" % (sT0, sT0, sCQ))
    a("s_lshl_b32 s%d, s%d, 2" % (sT0, sT0))
    a("s_add_u32 s%d, s%d, s%d" % (sT0, sT0, sW4))
    a("s_lshl_b32 s%d, s%d, 5" % (sT0, sT0))
    a("s_add_u32 s%d, s%d, s%d" % (sT0, sT0, sH))
    a("s_lshl_b32 s%d, s%d, 2" % (sT0, sT0))
    a("s_add_u32 s%d, s%d, %d" % (sT0, sT0, FQ_OFF))
    a("s_mov_b64 exec, 1")
    a("buffer_store_dword v%d, v%d, s[%d:%d], s%d offen sc1" % (vNON, vPOLL, sWS, sWS + 3, sT0))
    a("s_mov_b64 exec, -1")
    stamp("A")
    QR, QT = 32, 96
    vQW, vQRD, vL32 = 15, 16, 31
    a("s_lshl_b32 s%d, s%d, 2" % (sT0, sAP))
    a("s_add_u32 s%d, s%d, s%d" % (sT0, sT0, sAB))
    a("s_lshl_b32 s%d, s%d, 15" % (sK, sT0))
    if QA_OFF:
        a("s_add_u32 s%d, s%d, %d" % (sK, sK, QA_OFF))
    a("s_lshl_b32 s%d, s%d, 13" % (sT1, sW4))
    a("s_add_u32 s%d, s%d, s%d" % (sK + 1, sK, sT1))
    a("s_add_u32 s%d, s%d, %d" % (sK + 1, sK + 1, NQREG * 1024))
    a("s_add_u32 s%d, s%d, 4096" % (sK + 2, sK + 1))
    a("s_lshl_b32 s%d, s%d, 11" % (sK + 3, sAP))
    a("s_add_u32 s%d, s%d, %d" % (sK + 3, sK + 3, FQ_OFF))
    a("s_add_u32 s%d, s%d, %d" % (sT1, sT1, QL))
    a("v_add_u32 v%d, s%d, v%d" % (vQW, sT1, vL16))
    a("v_add_u32 v%d, %d, v%d" % (vQRD, QL, vL16))
    vCA = 80
    vKEY, vG2, vF = 17, 18, 19
    a("v_and_b32 v%d, 31, v%d" % (vKEY, vL))
    a("v_lshrrev_b32 v%d, 5, v%d" % (vG2, vL))
    a("v_and_b32 v%d, 3, v%d" % (vF, vKEY))
    a("v_bfe_u32 v%d, v%d, 2, 2" % (vTMP, vKEY))
    a("v_lshl_add_u32 v%d, v%d, 2, v%d" % (vF, vF, vTMP))
    a("v_xor_b32 v%d, v%d, v%d" % (vF, vF, vG2))
    a("s_lshl_b32 s%d, s%d, 15" % (sT1, sW4))
    a("v_lshlrev_b32 v%d, 10, v%d" % (vTMP, vKEY))
    a("v_add_u32 v%d, s%d, v%d" % (vTMP, sT1, vTMP))
    for s8 in range(8):
        a("v_xor_b32 v%d, %d, v%d" % (vTMP + 1, 2 * s8, vF))
        a("v_lshl_add_u32 v%d, v%d, 4, v%d" % (vCA + s8, vTMP + 1, vTMP))
    vM, vM2, vLS = 20, 21, 22
    vMXA, vPW, vPR = 23, 24, 25
    a("v_lshlrev_b32 v%d, 4, v%d" % (vMXA, vKEY))
    a("v_add_u32 v%d, %d, v%d" % (vMXA, MX, vMXA))
    a("s_lshl_b32 s%d, s%d, 2" % (sT0, sW4))
    a("v_add_u32 v26, s%d, v%d" % (sT0, vMXA))
    a("v_mul_u32_u24 v%d, 272, v%d" % (vPR, vKEY))
    a("v_add_u32 v%d, %d, v%d" % (vPR, PL, vPR))
    a("s_lshl_b32 s%d, s%d, 6" % (sT0, sW4))
    a("v_lshl_add_u32 v%d, v%d, 3, v%d" % (vPW, vG2, vPR))
    a("v_add_u32 v%d, s%d, v%d" % (vPW, sT0, vPW))
    a("v_lshl_add_u32 v%d, v%d, 4, v%d" % (vPR, vG2, vPR))
    vTA = 88
    vLAM, vGAM = 240, 241
    a("v_bfe_u32 v%d, v%d, 4, 1" % (vGAM, vL))
    a("v_lshrrev_b32 v%d, 2, v%d" % (vLAM, vC16))
    a("v_lshl_add_u32 v%d, v%d, 3, v%d" % (vTMP, vG2, vLAM))
    a("v_lshlrev_b32 v%d, 10, v%d" % (vTMP, vTMP))
    a("v_and_b32 v%d, 1, v%d" % (vTMP + 1, vC16))
    a("v_lshl_add_u32 v%d, v%d, 3, v%d" % (vTMP, vTMP + 1, vTMP))
    a("s_lshl_b32 s%d, s%d, 8" % (sT0, sW4))
    a("v_add_u32 v%d, s%d, v%d" % (vTMP, sT0, vTMP))
    a("v_bfe_u32 v%d, v%d, 1, 1" % (vTMP + 1, vC16))
    a("v_lshl_add_u32 v%d, v%d, 1, v%d" % (vTMP + 1, vGAM, vTMP + 1))
    a("v_lshlrev_b32 v242, 1, v%d" % vG2)
    a("v_xor_b32 v%d, v%d, v242" % (vTMP + 1, vTMP + 1))
    for ct in range(4):
        for e in range(2):
            a("v_xor_b32 v242, %d, v%d" % (ct, vLAM))
            a("v_lshl_add_u32 v242, v242, 2, v%d" % (vTMP + 1))
            if e:
                a("v_xor_b32 v242, 1, v242")
            a("v_lshl_add_u32 v%d, v242, 4, v%d" % (vTA + 2 * ct + e, vTMP))
            if e:
                a("v_add_u32 v%d, 4096, v%d" % (vTA + 2 * ct + e, vTA + 2 * ct + e))
    vIL = 243
    vOW, vOR, vOG = 27, 28, 29
    a("s_mul_i32 s%d, s%d, 4608" % (sT0, sW4))
    a("s_add_u32 s%d, s%d, %d" % (sT0, sT0, OST))
    a("v_mul_u32_u24 v%d, 144, v%d" % (vOW, vKEY))
    a("v_lshl_add_u32 v%d, v%d, 3, v%d" % (vOW, vG2, vOW))
    a("v_add_u32 v%d, s%d, v%d" % (vOW, sT0, vOW))
    a("v_lshrrev_b32 v%d, 3, v%d" % (vTMP, vL))
    a("v_and_b32 v%d, 7, v%d" % (vTMP + 1, vL))
    a("v_mul_u32_u24 v%d, 144, v%d" % (vOR, vTMP))
    a("v_lshl_add_u32 v%d, v%d, 4, v%d" % (vOR, vTMP + 1, vOR))
    a("v_add_u32 v%d, s%d, v%d" % (vOR, sT0, vOR))
    a("v_lshlrev_b32 v%d, 17, v%d" % (vOG, vTMP))
    a("v_lshl_add_u32 v%d, v%d, 4, v%d" % (vOG, vTMP + 1, vOG))
    a("s_lshl_b32 s%d, s%d, 22" % (sT0, sAP))
    a("s_lshl_b32 s%d, s%d, 15" % (sT1, sW4))
    a("s_add_u32 s%d, s%d, s%d" % (sT0, sT0, sT1))
    a("s_lshl_b32 s%d, s%d, 13" % (sT1, sAB))
    a("s_add_u32 s%d, s%d, s%d" % (sT0, sT0, sT1))
    a("s_lshl_b32 s%d, s%d, 8" % (sT1, sAS))
    a("s_add_u32 s%d, s%d, s%d" % (sT0, sT0, sT1))
    a("s_add_u32 s%d, s%d, %d" % (sOP, sT0, OP_OFF))
    for u in range(1, 4):
        a("s_add_u32 s%d, s%d, %d" % (sOP + u, sOP, u * 8 * 131072))
    seq_wait(SEQA, 2)
    seq_wait(0, 1, vaddr=vSBO)
    stamp("A")
    a.c("---- wave 0 polls the q flags, then everyone loads Q")
    l_n0 = a.newlabel("L_notw0")
    l_j0 = a.newlabel("L_join")
    a("s_cmp_lg_u32 s%d, 0" % sW4)
    a("s_cbranch_scc1 %s" % l_n0)
    lq = a.newlabel("L_q")
    lqd = a.newlabel("L_qd")
    a.label(lq)
    for hf in range(2):
        a("buffer_load_dwordx4 %s, v%d, s[%d:%d], s%d offen offset:%d sc1" % (vr(QT + 4 * hf, 4), vL16, sWS, sWS + 3, sK + 3, 1024 * hf))
    a("s_waitcnt vmcnt(0)")
    for k in range(8):
        a("v_xor_b32 v%d, s%d, v%d" % (QT + k, sMSK, QT + k))
    a("v_or3_b32 v%d, v%d, v%d, v%d" % (vTMP, QT, QT + 1, QT + 2))
    a("v_or3_b32 v%d, v%d, v%d, v%d" % (vTMP, vTMP, QT + 3, QT + 4))
    a("v_or3_b32 v%d, v%d, v%d, v%d" % (vTMP, vTMP, QT + 5, QT + 6))
    a("v_or_b32 v%d, v%d, v%d" % (vTMP, vTMP, QT + 7))
    a("v_cmp_ne_u32 vcc, 0, v%d" % vTMP)
    a("s_cbranch_vccz %s" % lqd)
    a("s_sub_u32 s%d, s%d, 1" % (sTO, sTO))
    a("s_cbranch_scc1 L_end")
    a("s_sleep %d" % SLP)
    a("s_branch %s" % lq)
    a.label(lqd)
    seq_set_at(SEQG, 1)
    a("s_branch %s" % l_j0)
    a.label(l_n0)
    seq_wait(SEQG, 1, 1)
    a.label(l_j0)
    stamp("A")
    for st in range(NQREG):
        a("buffer_load_dwordx4 %s, v%d, s[%d:%d], s%d offen offset:%d %s" % (vr(QR + 4 * st, 4), vL16, sWS, sWS + 3, sK, 1024 * st, QPOL))
    for i in range(6):
        a("buffer_load_dwordx4 %s, v%d, s[%d:%d], s%d offen offset:%d %s" % (vr(QT + 4 * i, 4), vL16, sWS, sWS + 3, sK + 1 + (i >> 2), 1024 * (i & 3), QPOL))
    l3 = a.newlabel("L_w3")
    a("s_cmp_eq_u32 s%d, 3" % sW4)
    a("s_cbranch_scc1 %s" % l3)
    for i in range(6, 8):
        a("buffer_load_dwordx4 %s, v%d, s[%d:%d], s%d offen offset:%d %s" % (vr(QT + 4 * i, 4), vL16, sWS, sWS + 3, sK + 1 + (i >> 2), 1024 * (i & 3), QPOL))
    a("s_waitcnt vmcnt(0)")
    for i in range(6, 8):
        a("ds_write_b128 v%d, %s offset:%d" % (vQW, vr(QT + 4 * i, 4), 1024 * i))
    a.label(l3)
    a("s_waitcnt vmcnt(0)")
    for i in range(6):
        a("ds_write_b128 v%d, %s offset:%d" % (vQW, vr(QT + 4 * i, 4), 1024 * i))
    a("s_waitcnt lgkmcnt(0)")
    vm.ops = []
    seq_set(3)
    seq_wait(SEQA, 3)
    stamp("A")
    seq_wait(0, 2, vaddr=vSBO)
    stamp("A")
    a.c("---- QK^T")
    S = 208
    CF, QFR = 48, 64
    DEPTH = 4
    nout = []

    def qk_issue(st):
        n = 1
        a("ds_read_b128 %s, v%d offset:%d" % (vr(CF + 4 * (st % DEPTH), 4), vCA + (st & 7), 256 * (st >> 3)))
        if st >= NQREG:
            a("ds_read_b128 %s, v%d offset:%d" % (vr(QFR + 4 * (st % DEPTH), 4), vQRD, 1024 * (st - NQREG)))
            n = 2
        nout.append(n)

    for st in range(DEPTH):
        qk_issue(st)
    for st in range(32):
        pend = sum(nout[st + 1:])
        a("s_waitcnt lgkmcnt(%d)" % pend)
        qb = vr(QR + 4 * st, 4) if st < NQREG else vr(QFR + 4 * (st % DEPTH), 4)
        a("v_mfma_f32_32x32x16_bf16 %s, %s, %s, %s" % (vr(S, 16), vr(CF + 4 * (st % DEPTH), 4), qb, "0" if st == 0 else vr(S, 16)))
        if st + DEPTH < 32:
            qk_issue(st + DEPTH)
    a.c("---- softmax")
    a("s_nop 15")
    a("v_max3_f32 v%d, v%d, v%d, v%d" % (vM, S, S + 1, S + 2))
    for k in range(3, 15, 2):
        a("v_max3_f32 v%d, v%d, v%d, v%d" % (vM, vM, S + k, S + k + 1))
    a("v_max_f32 v%d, v%d, v%d" % (vM, vM, S + 15))
    a("v_mov_b32 v%d, v%d" % (vM2, vM))
    a("s_nop 1")
    a("v_permlane32_swap_b32 v%d, v%d" % (vM, vM2))
    a("v_max_f32 v%d, v%d, v%d" % (vM, vM, vM2))
    a("ds_write_b32 v26, v%d" % vM)
    a("s_waitcnt lgkmcnt(0)")
    stamp("A")
    seq_set(4)
    seq_wait(SEQA, 4)
    a("ds_read_b128 v[48:51], v%d" % vMXA)
    a("s_waitcnt lgkmcnt(0)")
    a("v_max3_f32 v%d, v48, v49, v50" % vM)
    a("v_max_f32 v%d, v%d, v51" % (vM, vM))
    for k in range(16):
        a("v_sub_f32 v%d, v%d, v%d" % (S + k, S + k, vM))
    for k in range(16):
        a("v_exp_f32 v%d, v%d" % (S + k, S + k))
    a("s_nop 0")
    for ig in range(4):
        a("v_cvt_pk_bf16_f32 v%d, v%d, v%d" % (48 + 2 * ig, S + 4 * ig, S + 4 * ig + 1))
        a("v_cvt_pk_bf16_f32 v%d, v%d, v%d" % (49 + 2 * ig, S + 4 * ig + 2, S + 4 * ig + 3))
        a("ds_write_b64 v%d, %s offset:%d" % (vPW, vr(48 + 2 * ig, 2), 16 * ig))
    a("v_add_f32 v%d, v%d, v%d" % (vLS, S, S + 1))
    for k in range(2, 16):
        a("v_add_f32 v%d, v%d, v%d" % (vLS, vLS, S + k))
    a("v_mov_b32 v%d, v%d" % (vM2, vLS))
    a("s_nop 1")
    a("v_permlane32_swap_b32 v%d, v%d" % (vLS, vM2))
    a("v_add_f32 v%d, v%d, v%d" % (vLS, vLS, vM2))
    a("ds_write_b32 v26, v%d offset:%d" % (vLS, LP - MX))
    a("s_waitcnt lgkmcnt(0)")
    seq_set(5)
    seq_wait(SEQA, 5)
    stamp("A")
    a.c("---- PV (two passes, epilogue of pass 0 under pass 1)")
    O = 96
    PF = 48
    AF = 160
    OB = 176
    RB = 192
    lds = []

    def L(tag, txt):
        a(txt)
        lds.append(tag)

    def lwait(tag):
        idx = max(i for i, t in enumerate(lds) if t == tag)
        n = len(lds) - 1 - idx
        a("s_waitcnt lgkmcnt(%d)" % min(n, 15))

    def pv_issue(r, ks):
        buf = ks & 1
        L("p%d_%d" % (r, ks), "ds_read_b128 %s, v%d offset:%d" % (vr(PF + 4 * buf, 4), vPR, 32 * ks))
        for c2 in range(2):
            ct = 2 * r + c2
            for e in range(2):
                L("a%d_%d_%d" % (r, ks, c2), "ds_read_b64_tr_b16 %s, v%d offset:%d" % (vr(AF + 8 * buf + 4 * c2 + 2 * e, 2), vTA + 2 * ct + e, 16384 * (ks & 3)))

    def ep_cvt(r, c2, ig):
        ct = 2 * r + c2
        d = OB + 8 * c2 + 2 * ig
        a("v_cvt_pk_bf16_f32 v%d, v%d, v%d" % (d, O + 16 * ct + 4 * ig, O + 16 * ct + 4 * ig + 1))
        a("v_cvt_pk_bf16_f32 v%d, v%d, v%d" % (d + 1, O + 16 * ct + 4 * ig + 2, O + 16 * ct + 4 * ig + 3))
        L("w%d" % r, "ds_write_b64 v%d, %s offset:%d" % (vOW, vr(d, 2), 64 * c2 + 16 * ig))

    def ep_read(r, u):
        L("r%d_%d" % (r, u), "ds_read_b128 %s, v%d offset:%d" % (vr(RB + 4 * u, 4), vOR, 8 * 144 * u))

    def ep_store(r, u):
        lwait("r%d_%d" % (r, u))
        a("buffer_store_dwordx4 %s, v%d, s[%d:%d], s%d offen offset:%d sc1" % (vr(RB + 4 * u, 4), vOG, sWS, sWS + 3, sOP + u, 128 * r))

    L("lp", "ds_read_b128 v[56:59], v%d offset:%d" % (vMXA, LP - MX))
    pv_issue(0, 0)
    for r in range(2):
        for ks in range(8):
            buf = ks & 1
            if ks + 1 < 8:
                if ks + 1 == 4:
                    for k in range(4):
                        a("v_add_u32 v%d, 0x10000, v%d" % (vTA + 4 * r + k, vTA + 4 * r + k))
                pv_issue(r, ks + 1)
            elif r == 0:
                pv_issue(1, 0)
            for c2 in range(2):
                ct = 2 * r + c2
                lwait("a%d_%d_%d" % (r, ks, c2))
                a("v_mfma_f32_32x32x16_bf16 %s, %s, %s, %s" % (vr(O + 16 * ct, 16), vr(AF + 8 * buf + 4 * c2, 4), vr(PF + 4 * buf, 4),
                                                             "0" if ks == 0 else vr(O + 16 * ct, 16)))
                if r == 1:
                    if ks in (1, 2):
                        ep_cvt(0, ks - 1, 2 * c2)
                        ep_cvt(0, ks - 1, 2 * c2 + 1)
                    if ks == 3:
                        if c2 == 0:
                            lwait("w0")
                        ep_read(0, 2 * c2)
                        ep_read(0, 2 * c2 + 1)
                    if ks == 5:
                        ep_store(0, 2 * c2)
                        ep_store(0, 2 * c2 + 1)
    a.c("---- O epilogue (pass 1)")
    stamp("A")
    a("v_add_f32 v%d, v56, v57" % vLS)
    a("v_add_f32 v58, v58, v59")
    a("v_add_f32 v%d, v%d, v58" % (vLS, vLS))
    a("s_nop 7")
    for ig in range(4):
        ep_cvt(1, 0, ig)
    for ig in range(4):
        ep_cvt(1, 1, ig)
    lwait("w1")
    for u in range(4):
        ep_read(1, u)
    for u in range(4):
        ep_store(1, u)
    stamp("A")
    a("s_lshl_b32 s%d, s%d, 17" % (sT0, sAP))
    a("s_lshl_b32 s%d, s%d, 10" % (sT1, sW4))
    a("s_add_u32 s%d, s%d, s%d" % (sT0, sT0, sT1))
    a("s_lshl_b32 s%d, s%d, 8" % (sT1, sAB))
    a("s_add_u32 s%d, s%d, s%d" % (sT0, sT0, sT1))
    a("s_lshl_b32 s%d, s%d, 3" % (sT1, sAS))
    a("s_add_u32 s%d, s%d, s%d" % (sT0, sT0, sT1))
    a("s_add_u32 s%d, s%d, %d" % (sT0, sT0, ST_OFF))
    a("v_lshlrev_b32 v15, 12, v%d" % vKEY)
    a("v_mov_b32 v60, v%d" % vM)
    a("v_mov_b32 v61, v%d" % vLS)
    a("s_mov_b64 exec, 0xffffffff")
    a("s_waitcnt vmcnt(0)")
    a("buffer_store_dwordx2 v[60:61], v15, s[%d:%d], s%d offen sc1" % (sWS, sWS + 3, sT0))
    a("s_mov_b64 exec, -1")
    seq_set(6)
    stamp("A")
    a.c("---- combine (b = a)")
    OL, SM = 48, 80
    a("s_lshl_b32 s%d, s%d, 5" % (sT0, sP))
    a("s_add_u32 s%d, s%d, s%d" % (sT0, sT0, sH))
    a("s_lshl_b32 s%d, s%d, 2" % (sT1, sT0))
    a("s_add_u32 s%d, s%d, s%d" % (sT1, sT1, sCQ))
    a("s_lshl_b32 s%d, s%d, 2" % (sT1, sT1))
    a("s_add_u32 s%d, s%d, s%d" % (sT1, sT1, sW4))
    a("s_lshl_b32 s%d, s%d, 8" % (sT2, sT1))
    a("s_add_u32 s%d, s%d, %d" % (sT2, sT2, ST_OFF))
    a("s_lshl_b32 s%d, s%d, 13" % (sT1, sT1))
    a("s_add_u32 s%d, s%d, %d" % (sT1, sT1, OP_OFF))
    a("v_lshlrev_b32 v15, 6, v%d" % vG)
    a("v_lshlrev_b32 v16, 11, v%d" % vG)
    a("v_lshl_add_u32 v16, v%d, 4, v16" % vC16)
    ls = a.newlabel("L_st")
    lsd = a.newlabel("L_std")
    a.label(ls)
    for v4 in range(4):
        a("buffer_load_dwordx4 %s, v15, s[%d:%d], s%d offen offset:%d sc1" % (vr(SM + 4 * v4, 4), sWS, sWS + 3, sT2, 16 * v4))
    a("s_waitcnt vmcnt(0)")
    a("v_max3_u32 v%d, v%d, v%d, v%d" % (vTMP, SM, SM + 1, SM + 2))
    for k in range(3, 15, 2):
        a("v_max3_u32 v%d, v%d, v%d, v%d" % (vTMP, vTMP, SM + k, SM + k + 1))
    a("v_max_u32 v%d, v%d, v%d" % (vTMP, vTMP, SM + 15))
    a("v_cmp_eq_u32 vcc, -1, v%d" % vTMP)
    a("s_cbranch_vccz %s" % lsd)
    a("s_sub_u32 s%d, s%d, 1" % (sTO, sTO))
    a("s_cbranch_scc1 L_end")
    a("s_sleep %d" % SLP2)
    a("s_branch %s" % ls)
    a.label(lsd)
    vm.ops = []
    for u in range(8):
        a("buffer_load_dwordx4 %s, v16, s[%d:%d], s%d offen offset:%d sc1" % (vr(OL + 4 * u, 4), sWS, sWS + 3, sT1, 256 * u))
        vm.issue("ol%d" % u)
    stamp("A")
    a("v_max3_f32 v%d, v%d, v%d, v%d" % (vM, SM, SM + 2, SM + 4))
    a("v_max3_f32 v%d, v%d, v%d, v%d" % (vM, vM, SM + 6, SM + 8))
    a("v_max3_f32 v%d, v%d, v%d, v%d" % (vM, vM, SM + 10, SM + 12))
    a("v_max_f32 v%d, v%d, v%d" % (vM, vM, SM + 14))
    a("v_mov_b32 v%d, v%d" % (vM2, vM))
    a("s_nop 1")
    a("v_permlane32_swap_b32 v%d, v%d" % (vM, vM2))
    a("v_max_f32 v%d, v%d, v%d" % (vM, vM, vM2))
    a("v_mov_b32 v%d, v%d" % (vM2, vM))
    a("s_nop 1")
    a("v_permlane16_swap_b32 v%d, v%d" % (vM, vM2))
    a("v_max_f32 v%d, v%d, v%d" % (vM, vM, vM2))
    for u in range(8):
        a("v_sub_f32 v%d, v%d, v%d" % (SM + 2 * u, SM + 2 * u, vM))
    for u in range(8):
        a("v_exp_f32 v%d, v%d" % (SM + 2 * u, SM + 2 * u))
    a("s_nop 0")
    a("v_mul_f32 v%d, v%d, v%d" % (vLS, SM, SM + 1))
    for u in range(1, 8):
        a("v_fmac_f32 v%d, v%d, v%d" % (vLS, SM + 2 * u, SM + 2 * u + 1))
    a("v_mov_b32 v%d, v%d" % (vM2, vLS))
    a("s_nop 1")
    a("v_permlane32_swap_b32 v%d, v%d" % (vLS, vM2))
    a("v_add_f32 v%d, v%d, v%d" % (vLS, vLS, vM2))
    a("v_mov_b32 v%d, v%d" % (vM2, vLS))
    a("s_nop 1")
    a("v_permlane16_swap_b32 v%d, v%d" % (vLS, vM2))
    a("v_add_f32 v%d, v%d, v%d" % (vLS, vLS, vM2))
    a("v_rcp_f32 v%d, v%d" % (vIL, vLS))
    a("s_nop 0")
    for u in range(8):
        a("v_mul_f32 v%d, v%d, v%d" % (SM + 2 * u, SM + 2 * u, vIL))
    CA = 96
    for u in range(8):
        vm.wait("ol%d" % u)
        for k in range(4):
            a("v_lshlrev_b32 v%d, 16, v%d" % (104 + 2 * k, OL + 4 * u + k))
            a("v_and_b32 v%d, 0xffff0000, v%d" % (105 + 2 * k, OL + 4 * u + k))
        for k in range(8):
            if u == 0:
                a("v_mul_f32 v%d, v%d, v%d" % (CA + k, 104 + k, SM))
            else:
                a("v_fmac_f32 v%d, v%d, v%d" % (CA + k, 104 + k, SM + 2 * u))
    a("s_nop 1")
    for k in range(4):
        a("v_permlane32_swap_b32 v%d, v%d" % (CA + k, CA + k + 4))
    for k in range(4):
        a("v_add_f32 v%d, v%d, v%d" % (CA + k, CA + k, CA + k + 4))
    a("s_nop 1")
    for k in range(2):
        a("v_permlane16_swap_b32 v%d, v%d" % (CA + k, CA + k + 2))
    for k in range(2):
        a("v_add_f32 v%d, v%d, v%d" % (CA + k, CA + k, CA + k + 2))
    a("v_cvt_pk_bf16_f32 v%d, v%d, v%d" % (CA, CA, CA + 1))
    a("s_mul_i32 s%d, s%d, 272" % (sT0, sW4))
    if CC:
        a("s_add_u32 s%d, s%d, %d" % (sT0, sT0, CC))
    a("v_lshlrev_b32 v15, 4, v%d" % vC16)
    a("v_lshl_add_u32 v15, v%d, 2, v15" % vG)
    a("v_add_u32 v15, s%d, v15" % sT0)
    seq_wait(SEQA, 6)
    a("ds_write_b32 v15, v%d" % CA)
    a("s_waitcnt lgkmcnt(0)")
    seq_set(7)
    stamp("A")
    a.c("---- final reduce (wave 0 only)")
    l_e = a.newlabel("L_aend")
    a("s_cmp_lg_u32 s%d, 0" % sW4)
    a("s_cbranch_scc1 %s" % l_e)
    FL = 48
    a("s_lshl_b32 s%d, s%d, 11" % (sT0, sCQ))
    a("s_lshl_b32 s%d, s%d, 10" % (sT1, sP))
    a("s_add_u32 s%d, s%d, s%d" % (sT0, sT0, sT1))
    a("s_lshl_b32 s%d, s%d, 5" % (sT1, sH))
    a("s_add_u32 s%d, s%d, s%d" % (sK, sT0, sT1))
    a("v_and_b32 v16, 3, v%d" % vL)
    a("v_lshl_add_u32 v16, v16, 2, v%d" % vG)
    a("v_lshlrev_b32 v16, 1, v16")
    seq_wait(SEQB, 4)
    lp = a.newlabel("L_fp")
    dn = a.newlabel("L_fpd")
    a.label(lp)
    for u in range(8):
        a("buffer_load_dwordx4 %s, v%d, s[%d:%d], s%d offen offset:%d sc1" % (vr(FL + 4 * u, 4), vL16, sWS, sWS + 3, sK2 + (u >> 2), 1024 * (u & 3)))
    for u in range(8):
        a("s_waitcnt vmcnt(%d)" % (7 - u))
        if u == 0:
            a("v_max3_u32 v15, v%d, v%d, v%d" % (FL, FL + 1, FL + 2))
            a("v_max_u32 v15, v15, v%d" % (FL + 3))
        else:
            a("v_max3_u32 v15, v15, v%d, v%d" % (FL + 4 * u, FL + 4 * u + 1))
            a("v_max3_u32 v15, v15, v%d, v%d" % (FL + 4 * u + 2, FL + 4 * u + 3))
            for k in range(4):
                a("v_add_f32 v%d, v%d, v%d" % (FL + k, FL + k, FL + 4 * u + k))
    a("v_cmp_eq_u32 vcc, -1, v15")
    a("s_cbranch_vccz %s" % dn)
    a("s_sub_u32 s%d, s%d, 1" % (sTO, sTO))
    a("s_cbranch_scc1 L_end")
    a("s_sleep %d" % SLP3)
    a("s_branch %s" % lp)
    a.label(dn)
    stamp("A")
    for k in range(4):
        a("v_add_f32_dpp v%d, v%d, v%d row_ror:8 row_mask:0xf bank_mask:0xf" % (FL + k, FL + k, FL + k))
    for k in range(4):
        a("v_add_f32_dpp v%d, v%d, v%d row_ror:4 row_mask:0xf bank_mask:0xf" % (FL + k, FL + k, FL + k))
    a("s_nop 1")
    a("v_permlane32_swap_b32 v%d, v%d" % (FL, FL + 2))
    a("v_permlane32_swap_b32 v%d, v%d" % (FL + 1, FL + 3))
    a("v_add_f32 v%d, v%d, v%d" % (FL, FL, FL + 2))
    a("v_add_f32 v%d, v%d, v%d" % (FL + 1, FL + 1, FL + 3))
    a("s_nop 1")
    a("v_permlane16_swap_b32 v%d, v%d" % (FL, FL + 1))
    a("v_add_f32 v%d, v%d, v%d" % (FL, FL, FL + 1))
    a("v_cvt_pk_bf16_f32 v%d, v%d, v%d" % (FL, FL, FL))
    a("s_mov_b32 exec_lo, 0x000f000f")
    a("s_mov_b32 exec_hi, 0x000f000f")
    a("buffer_store_short v%d, v16, s[%d:%d], s%d offen" % (FL, sOUT, sOUT + 3, sK))
    a("s_mov_b64 exec, -1")
    stamp("A")
    stamp_flush("A")
    a.label(l_e)
    a("s_endpgm")

    a.label("L_B")
    vm = Vm(a)
    stamp("B")
    vL16b, vWVO, vWOO = 13, 9, 10
    a("v_lshlrev_b32 v%d, 4, v%d" % (vL16b, vL))
    a("s_lshl_b32 s%d, s%d, 22" % (sK, sAB))
    a("s_lshl_b32 s%d, s%d, 17" % (sT0, sAS))
    a("s_add_u32 s%d, s%d, s%d" % (sK, sK, sT0))
    a("s_lshl_b32 s%d, s%d, 15" % (sK + 1, sW4))
    a("s_add_u32 s%d, s%d, s%d" % (sK, sK, sK + 1))
    a("v_lshlrev_b32 v%d, 16, v%d" % (vWVO, vG))
    a("v_lshl_add_u32 v%d, v%d, 4, v%d" % (vWVO, vC16, vWVO))
    a("s_lshl_b32 s%d, s%d, 18" % (sT0, sW4))
    a("v_add_u32 v%d, s%d, v%d" % (vWVO, sT0, vWVO))
    a("s_lshl_b32 s%d, s%d, 20" % (sK + 2, sCQ))
    a("s_lshl_b32 s%d, s%d, 8" % (sT0, sH))
    a("s_add_u32 s%d, s%d, s%d" % (sK + 2, sK + 2, sT0))
    a("v_lshlrev_b32 v%d, 13, v%d" % (vWOO, vG))
    a("v_lshl_add_u32 v%d, v%d, 4, v%d" % (vWOO, vC16, vWOO))
    a("s_lshl_b32 s%d, s%d, 8" % (sT0, sW4))
    a("v_add_u32 v%d, s%d, v%d" % (vWOO, sT0, vWOO))
    a("s_lshl_b32 s%d, s%d, 17" % (sT1, sH))
    for i in range(4):
        a(("s_add_u32 s%d, s%d, %d" % (sT0, sCQ, i)) if (ROT & 2) else ("s_mov_b32 s%d, %d" % (sT0, i)))
        a("s_and_b32 s%d, s%d, 3" % (sT0, sT0))
        a("s_lshl_b32 s%d, s%d, 15" % (sK2 + i, sT0))
        a("s_add_u32 s%d, s%d, s%d" % (sK2 + i, sK2 + i, sT1))
    a.c("---- sentinel prefill (wave 3 of B)")
    lnp = a.newlabel("L_nopf")
    a("v_mov_b32 v15, 0")
    a("s_cmp_lg_u32 s%d, 3" % sW4)
    a("s_cbranch_scc1 %s" % lnp)
    for k in range(4):
        a("v_mov_b32 v%d, -1" % (248 + k))
    a("s_lshl_b32 s%d, s%d, 7" % (sT0, sP))
    a("s_lshl_b32 s%d, s%d, 5" % (sT1, sCQ))
    a("s_add_u32 s%d, s%d, s%d" % (sT0, sT0, sT1))
    a("s_add_u32 s%d, s%d, s%d" % (sT0, sT0, sH))
    a("v_mov_b32 v15, s%d" % sT0)
    a("s_lshl_b32 s%d, s%d, 13" % (sT0, sT0))
    a("s_add_u32 s%d, s%d, %d" % (sT0, sT0, FP_OFF))
    a("s_add_u32 s%d, s%d, 4096" % (sT1, sT0))
    for k in range(8):
        a("buffer_store_dwordx4 v[248:251], v%d, s[%d:%d], s%d offen offset:%d sc1" % (vL16b, sWS, sWS + 3, sT1 if k >= 4 else sT0, 1024 * (k & 3)))
    a("s_lshl_b32 s%d, s%d, 5" % (sT0, sP))
    a("s_add_u32 s%d, s%d, s%d" % (sT0, sT0, sH))
    a("s_lshl_b32 s%d, s%d, 2" % (sT0, sT0))
    a("s_add_u32 s%d, s%d, s%d" % (sT0, sT0, sCQ))
    a("s_lshl_b32 s%d, s%d, 10" % (sT0, sT0))
    a("s_add_u32 s%d, s%d, %d" % (sT0, sT0, ST_OFF))
    a("buffer_store_dwordx4 v[248:251], v%d, s[%d:%d], s%d offen sc1" % (vL16b, sWS, sWS + 3, sT0))
    if BDELAY:
        a("s_waitcnt vmcnt(0)")
        seq_set_at(SEQP, 1)
    a.label(lnp)
    if BDELAY:
        seq_wait(SEQA, 1)
    BUF = [32 + 32 * k for k in range(6)]
    state = {"ckv_sig": False, "nblk": 0, "pf": bool(BDELAY), "trig": False}

    def progress(n):
        done = vm.done_upto(n)
        if not state["pf"]:
            state["pf"] = True
            l2 = a.newlabel("L_nopf2")
            a("s_cmp_lg_u32 s%d, 3" % sW4)
            a("s_cbranch_scc1 %s" % l2)
            seq_set_at(SEQP, 1)
            a.label(l2)
        if not state["trig"] and sum(1 for t in vm.ops[:done + 1] if t == "ckv") >= QTRIG:
            state["trig"] = True
            seq_set(1)
        if not state["ckv_sig"]:
            idx = [i for i, t in enumerate(vm.ops) if t == "ckv"]
            if len(idx) == 32 and done >= idx[-1]:
                seq_set(2)
                stamp("B")
                state["ckv_sig"] = True
        while state["nblk"] < 5:
            k = state["nblk"]
            idx = [i for i, t in enumerate(vm.ops) if t == "blk%d" % k]
            if len(idx) == 8 and done >= idx[-1]:
                perm_block_to(BUF[k], BUF[k + 1])
                state["nblk"] += 1
            else:
                break

    def window(w):
        if len(vm.ops) >= w:
            vm.waitn(w - 1)
            progress(w - 1)

    def ld_ckv(i):
        f = ((i & 3) << 2) | ((i >> 2) & 3)
        a("s_add_u32 m0, s%d, %d" % (sK + 1, i * 1024))
        a("s_add_u32 s%d, s%d, %d" % (sT0, sK, i * 1024))
        a("v_xor_b32 v%d, %d, v%d" % (vTMP, 16 * f, vL16b))
        a("buffer_load_dwordx4 v%d, s[%d:%d], s%d offen %s lds" % (vTMP, sCKV, sCKV + 3, sT0, CKV_POL))
        vm.issue("ckv")

    def ld_wuv(j, k):
        a("s_add_u32 s%d, s%d, %d" % (sT0, sK + 2, j * 8192))
        a("buffer_load_dwordx4 %s, v%d, s[%d:%d], s%d offen %s" % (vr(BUF[k + 1] + 4 * j, 4), vWVO, sWUV, sWUV + 3, sT0, CKV_POL))
        vm.issue("blk%d" % k)

    def ld_wo(i, j, k):
        a("s_add_u32 s%d, s%d, %d" % (sT0, sK2 + i, j * 1024))
        a("buffer_load_dwordx4 %s, v%d, s[%d:%d], s%d offen %s" % (vr(BUF[k + 1] + 4 * j, 4), vWOO, sWO, sWO + 3, sT0, WO_POL))
        vm.issue("blk%d" % k)

    if ILV:
        for i in range(32):
            ld_ckv(i)
            window(WB)
            ld_wo(i >> 3, i & 7, i >> 3)
            window(WB)
        for j in range(8):
            ld_wuv(j, 4)
            window(WB2)
        BWUV, BWO = BUF[4], BUF[0:4]
    else:
        for i in range(32):
            ld_ckv(i)
            window(WB)
        for j in range(8):
            ld_wuv(j, 0)
            window(WB2)
        for i in range(4):
            for j in range(8):
                ld_wo(i, j, i + 1)
                window(WB2)
        BWUV, BWO = BUF[0], BUF[1:5]
    for n in range((WB2 - 1) // 8 * 8, -1, -8):
        vm.waitn(n)
        progress(n)
    assert state["nblk"] == 5 and state["ckv_sig"]
    stamp("B")
    if CUT:
        stamp_flush("B")
        a("s_endpgm")
    a.c("---- phase 4")
    vCR, vXW, vXR = 11, 12, 14
    a("v_mul_u32_u24 v%d, 272, v%d" % (vCR, vC16))
    a("v_lshl_add_u32 v%d, v%d, 4, v%d" % (vCR, vG, vCR))
    a("v_mov_b32 v%d, v%d" % (vXR, vCR))
    a("s_lshl_b32 s%d, s%d, 6" % (sT0, sW4))
    if CC:
        a("s_add_u32 s%d, s%d, %d" % (sT0, sT0, CC))
    a("v_add_u32 v%d, s%d, v%d" % (vCR, sT0, vCR))
    a("v_mov_b32 v%d, %d" % (vTMP, ZERO))
    a("v_cmp_gt_u32 vcc, 4, v%d" % vC16)
    a("s_nop 1")
    a("v_cndmask_b32 v%d, v%d, v%d, vcc" % (vCR, vTMP, vCR))
    a("v_add_u32 v%d, %d, v%d" % (vXR, CX, vXR))
    a("s_mul_i32 s%d, s%d, %d" % (sT0, sW4, 4 * 272))
    a("s_add_u32 s%d, s%d, %d" % (sT0, sT0, CX))
    a("v_lshlrev_b32 v%d, 4, v%d" % (vXW, vC16))
    a("v_add_u32 v%d, s%d, v%d" % (vXW, sT0, vXW))
    vXA = 16
    for i in range(4):
        a(("s_add_u32 s%d, s%d, %d" % (sT0, sCQ, i)) if (ROT & 2) else ("s_mov_b32 s%d, %d" % (sT0, i)))
        a("s_and_b32 s%d, s%d, 3" % (sT0, sT0))
        a("s_lshl_b32 s%d, s%d, 6" % (sT0, sT0))
        a("v_add_u32 v%d, s%d, v%d" % (vXA + i, sT0, vXR))
    vFS = 20
    a("v_lshrrev_b32 v%d, 1, v%d" % (vTMP, vC16))
    a("v_lshl_add_u32 v%d, v%d, 5, v%d" % (vTMP, vG, vTMP))
    a("v_lshlrev_b32 v%d, 13, v%d" % (vFS, vTMP))
    a("v_and_b32 v%d, 1, v%d" % (vTMP, vC16))
    a("v_lshl_add_u32 v%d, v%d, 5, v%d" % (vFS, vTMP, vFS))
    a("s_lshl_b32 s%d, s%d, 20" % (sT0, sP))
    a("s_lshl_b32 s%d, s%d, 16" % (sT1, sW4))
    a("s_add_u32 s%d, s%d, s%d" % (sT0, sT0, sT1))
    a("s_lshl_b32 s%d, s%d, 11" % (sT1, sCQ))
    a("s_add_u32 s%d, s%d, s%d" % (sT0, sT0, sT1))
    a("s_lshl_b32 s%d, s%d, 6" % (sT1, sH))
    a("s_add_u32 s%d, s%d, s%d" % (sT0, sT0, sT1))
    a("s_add_u32 s%d, s%d, %d" % (sK + 3, sT0, FP_OFF))
    seq_wait(SEQA, 7)
    stamp("B")
    AFR = 24
    D4 = 192
    a("ds_read_b128 %s, v%d" % (vr(AFR, 4), vCR))
    a("s_waitcnt lgkmcnt(0)")
    for t in range(8):
        a("v_mfma_f32_16x16x32_bf16 %s, %s, %s, 0" % (vr(D4 + 4 * t, 4), vr(AFR, 4), vr(BWUV + 4 * t, 4)))
    a("s_nop 7")
    a("s_mov_b64 exec, 0xffff")
    E4 = 224
    for b in range(4):
        for u in range(4):
            a("v_cvt_pk_bf16_f32 v%d, v%d, v%d" % (E4 + 4 * b + u, D4 + 8 * u + b, D4 + 8 * u + 4 + b))
        a("ds_write_b128 v%d, %s offset:%d" % (vXW, vr(E4 + 4 * b, 4), 272 * b))
    a("s_mov_b64 exec, -1")
    a("s_waitcnt lgkmcnt(0)")
    seq_set(3)
    seq_wait(SEQB, 3)
    a.c("---- phase 5")
    XA = 224
    for i in range(4):
        a("ds_read_b128 %s, v%d" % (vr(XA + 4 * i, 4), vXA + i))
    for i in range(4):
        a("s_waitcnt lgkmcnt(%d)" % (3 - i))
        for t in range(8):
            a("v_mfma_f32_16x16x32_bf16 %s, %s, %s, %s" % (vr(D4 + 4 * t, 4), vr(XA + 4 * i, 4), vr(BWO[i] + 4 * t, 4),
                                                         "0" if i == 0 else vr(D4 + 4 * t, 4)))
    a("s_nop 7")
    for t in range(8):
        a("v_permlane32_swap_b32 v%d, v%d" % (D4 + 4 * t, D4 + 4 * t + 2))
        a("v_permlane32_swap_b32 v%d, v%d" % (D4 + 4 * t + 1, D4 + 4 * t + 3))
    for t in range(8):
        a("v_add_f32 v%d, v%d, v%d" % (D4 + 4 * t, D4 + 4 * t, D4 + 4 * t + 2))
        a("v_add_f32 v%d, v%d, v%d" % (D4 + 4 * t + 1, D4 + 4 * t + 1, D4 + 4 * t + 3))
    for t in range(8):
        a("v_permlane16_swap_b32 v%d, v%d" % (D4 + 4 * t, D4 + 4 * t + 1))
    for t in range(8):
        a("v_add_f32 v%d, v%d, v%d" % (XA + t, D4 + 4 * t, D4 + 4 * t + 1))
    a("buffer_store_dwordx4 %s, v%d, s[%d:%d], s%d offen sc1" % (vr(XA, 4), vFS, sWS, sWS + 3, sK + 3))
    a("buffer_store_dwordx4 %s, v%d, s[%d:%d], s%d offen offset:16 sc1" % (vr(XA + 4, 4), vFS, sWS, sWS + 3, sK + 3))
    seq_set(4)
    stamp("B")
    stamp_flush("B")
    a.label("L_end")
    a("s_endpgm")

    txt = HEADER
    txt += "; @launch grid=(256,1,1) block=(512,1,1) lds=%d\n" % LDS_BYTES
    txt += '.amdgcn_target "amdgcn-amd-amdhsa--gfx950"\n.text\n.globl %s_kernel\n.p2align 8\n.type %s_kernel,@function\n%s_kernel:\n' % (NAME, NAME, NAME)
    txt += "\n".join(a.l) + "\n"
    txt += """.section .rodata,"a"
.p2align 6
.amdhsa_kernel %s_kernel
  .amdhsa_next_free_vgpr 256
  .amdhsa_next_free_sgpr 102
  .amdhsa_accum_offset 256
  .amdhsa_group_segment_fixed_size 0
  .amdhsa_kernarg_size 120
  .amdhsa_user_sgpr_count 2
  .amdhsa_user_sgpr_kernarg_segment_ptr 1
  .amdhsa_system_sgpr_workgroup_id_x 1
.end_amdhsa_kernel
""" % NAME
    return txt


if __name__ == "__main__":
    import argparse
    ap = argparse.ArgumentParser()
    ap.add_argument("-o", default="cdna_kernels/%s.s" % NAME)
    ap.add_argument("--wb", type=int, default=8)
    ap.add_argument("--debug", type=int, nargs="?", const=1, default=0)
    ap.add_argument("--ckvpol", default="nt")
    ap.add_argument("--wpol", default="nt")
    ap.add_argument("--bdelay", action="store_true")
    ap.add_argument("--slp", type=int, default=4)
    ap.add_argument("--wb2", type=int, default=8)
    ap.add_argument("--qtrig", type=int, default=20)
    ap.add_argument("--qpol", default="")
    ap.add_argument("--map", type=int, default=0)
    ap.add_argument("--wopol", default="nt")
    ap.add_argument("--ilv", type=int, default=1)
    ap.add_argument("--slp2", type=int, default=4)
    ap.add_argument("--slp3", type=int, default=4)
    ap.add_argument("--rot", type=int, default=1)
    ap.add_argument("--cut", type=int, default=0)
    args = ap.parse_args()
    open(args.o, "w").write(gen(WB=args.wb, DEBUG=args.debug, CKV_POL=args.ckvpol, W_POL=args.wpol, BDELAY=args.bdelay, SLP=args.slp, ROT=args.rot, CUT=args.cut, WB2=args.wb2, QTRIG=args.qtrig, QPOL=args.qpol, MAP=args.map, WO_POL=args.wopol, ILV=args.ilv, SLP2=args.slp2, SLP3=args.slp3))
```
